```python
import torch

def _softmax(x, axis=-1):
    return torch.softmax(x, dim=axis)
def _gelu(x):
    return torch.nn.functional.gelu(x, approximate="tanh")
def _silu(x):
    return torch.nn.functional.silu(x)
def _sigmoid(x):
    return torch.sigmoid(x)
def _layernorm(x, axis=-1, eps=1e-5):
    m = x.mean(dim=axis, keepdim=True)
    v = x.var(dim=axis, keepdim=True, unbiased=False)
    return (x - m) / torch.sqrt(v + eps)
def _scatter_add(tgt, idx, src, axis=0):
    return tgt.clone().index_add_(axis, idx, src)
def _segment_sum(src, seg, n):
    out = torch.zeros((n,) + src.shape[1:], dtype=src.dtype)
    return out.index_add_(0, seg, src)
def _pad(x, pw):
    flat = tuple(v for pair in reversed(pw) for v in pair)
    return torch.nn.functional.pad(x, flat)

kernel_name = 'gated_mix__grouped_kv_mqa__moe_arch_mod__prompt'

def setup_inputs():

    _w = (lambda a: (lambda t: t.to(torch.bfloat16) if t.is_floating_point() else t)(torch.as_tensor(a)))
    def _A_setup():
        B, S, D, H = 1, 2048, 1024, 32
        Dh = D // H
        return {
            "x": _w((lambda *s: torch.randn(*s, dtype=torch.bfloat16) * 0.05)(B, S, D)),
            "wq": _w((lambda *s: torch.randn(*s, dtype=torch.bfloat16) * 0.8)(D, H * Dh)),
            "wk": _w((lambda *s: torch.randn(*s, dtype=torch.bfloat16) * 0.8)(D, Dh)),
            "wv": _w((lambda *s: torch.randn(*s, dtype=torch.bfloat16) * 0.1)(D, Dh)),
            "wo": _w((lambda *s: torch.randn(*s, dtype=torch.bfloat16) * 0.1)(H * Dh, D)),
        }
    _A_in = _A_setup()

    def _B_setup():
        B, S, D, F, C = 1, 2048, 1024, 3584, 8
        return {
            "x": _w((lambda *s: torch.randn(*s, dtype=torch.bfloat16) * 0.05)(B, S, D)),
            "w_r": _w((lambda *s: torch.randn(*s, dtype=torch.bfloat16) * 1.6)(D)),
            "w_gate": _w((lambda *s: torch.randn(*s, dtype=torch.bfloat16) * 0.1)(D, F)),
            "w_up": _w((lambda *s: torch.randn(*s, dtype=torch.bfloat16) * 0.1)(D, F)),
            "w_down": _w((lambda *s: torch.randn(*s, dtype=torch.bfloat16) * 0.1)(F, D)),
        }
    _B_in = _B_setup()

    return {
        "A_x": _A_in["x"],
        "A_wq": _A_in["wq"],
        "A_wk": _A_in["wk"],
        "A_wv": _A_in["wv"],
        "A_wo": _A_in["wo"],
        "B_x": _B_in["x"],
        "B_w_r": _B_in["w_r"],
        "B_w_gate": _B_in["w_gate"],
        "B_w_up": _B_in["w_up"],
        "B_w_down": _B_in["w_down"],
        "gate_w": _w((lambda *s: torch.randn(*s, dtype=torch.bfloat16) * 0.05)(1024) * 16.0),
    }

def reference(A_x, A_wq, A_wk, A_wv, A_wo, B_x, B_w_r, B_w_gate, B_w_up, B_w_down, gate_w):
    def _A_ref(x, wq, wk, wv, wo):
        B, S, D = x.shape
        H = 32
        Dh = D // H
        q = (lambda x, *d: x.permute(*d))((x @ wq).reshape(B, S, H, Dh), 0, 2, 1, 3)
        k = x @ wk
        v = x @ wv
        scores = torch.einsum("bhqd,bkd->bhqk", q, k) * (Dh ** -0.5)
        p = _softmax(scores, axis=-1)
        o = torch.einsum("bhqk,bkd->bhqd", p, v)
        return (lambda x, *d: x.permute(*d))(o, 0, 2, 1, 3).reshape(B, S, H * Dh) @ wo

    def _B_ref(x, w_r, w_gate, w_up, w_down):
        B, S, D = x.shape
        C = 8
        r = x @ w_r
        idx = torch.argsort(-r, axis=-1)[:, :C]
        idx_e = (lambda x, n, axis: torch.repeat_interleave(x, n, dim=axis))(idx.reshape(B, C, 1), D, axis=2)
        x_sel = (lambda x, i, axis: torch.take_along_dim(x, i, dim=axis))(x, idx_e, axis=1)
        g = _silu(x_sel @ w_gate)
        u = x_sel @ w_up
        y = (g * u) @ w_down
        r_sel = _sigmoid((lambda x, i, axis: torch.take_along_dim(x, i, dim=axis))(r, idx, axis=1))
        y = y * r_sel.reshape(B, C, 1)
        b_off = (torch.arange(B) * S).reshape(B, 1)
        flat_idx = (idx + b_off).reshape(B * C)
        zero = (x * 0.0).reshape(B * S, D)
        upd = _scatter_add(zero, flat_idx, y.reshape(B * C, D), axis=0)
        return x + upd.reshape(B, S, D)

    x = A_x
    g = _sigmoid((x * gate_w).sum(-1, keepdims=True))
    a = _A_ref(x, A_wq, A_wk, A_wv, A_wo)
    b = _B_ref(x, B_w_r, B_w_gate, B_w_up, B_w_down)
    return g * a + (1 - g) * b
```

```python
import re

TRANS = ("v_exp_f32", "v_log_f32", "v_rcp_f32", "v_rsq_f32", "v_sqrt_f32", "v_sin_f32", "v_cos_f32",
         "v_exp_f16", "v_log_f16", "v_rcp_f16", "v_rcp_iflag_f32")

def regs_of(tok):
    tok = tok.strip()
    t = tok
    if t.startswith("-"): t = t[1:]
    if t.startswith("abs(") and t.endswith(")"): t = t[4:-1]
    if t.startswith("|") and t.endswith("|"): t = t[1:-1]
    m = re.fullmatch(r"([vsa])(\d+)", t)
    if m: return {(m.group(1), int(m.group(2)))}
    m = re.fullmatch(r"([vsa])\[(\d+):(\d+)\]", t)
    if m: return {(m.group(1), i) for i in range(int(m.group(2)), int(m.group(3)) + 1)}
    if t in ("vcc", "vcc_lo", "vcc_hi"): return {("x", "vcc")}
    if t in ("exec", "exec_lo", "exec_hi"): return {("x", "exec")}
    if t == "m0": return {("x", "m0")}
    return set()

def split_ops(s):
    out = []; depth = 0; cur = ""
    for ch in s:
        if ch in "[(": depth += 1
        if ch in "])": depth -= 1
        if ch == "," and depth == 0:
            out.append(cur.strip()); cur = ""
        else:
            cur += ch
    if cur.strip(): out.append(cur.strip())
    return out

class Ins:
    def __init__(self, text):
        self.text = text
        t = text.split(";")[0].strip()
        self.label = None; self.op = None; self.ops = []; self.mods = ""
        self.directive = False
        if not t:
            self.directive = True; return
        if t.endswith(":"):
            self.label = t[:-1]; return
        if t.startswith("."):
            self.directive = True; return
        parts = t.split(None, 1)
        self.op = parts[0]
        rest = parts[1] if len(parts) > 1 else ""
        ops = split_ops(rest)
        if ops:
            last = ops[-1].split()
            ops[-1] = last[0]
            self.mods = " ".join(last[1:])
        self.ops = ops
        self.classify()

    def classify(self):
        op = self.op; o = self.ops
        self.kind = "other"; self.wr = set(); self.rd = set()
        self.passes = 0; self.srcc = set(); self.srcab = set(); self.storedata = set()
        R = regs_of
        if op.startswith("v_mfma") or op.startswith("v_smfmac"):
            self.kind = "mfma"
            self.wr = R(o[0]); self.srcab = R(o[1]) | R(o[2])
            if op.startswith("v_smfmac"):
                self.srcc = R(o[0]); self.srcab |= R(o[3])
            else:
                self.srcc = R(o[3])
            self.rd = self.srcab | self.srcc
            self.passes = 8 if "32x32" in op else 4
        elif op.startswith("v_"):
            self.kind = "valu"
            base = op.replace("_e32", "").replace("_e64", "").replace("_dpp", "").replace("_sdwa", "")
            self.base = base
            if base == "v_nop": return
            self.wr = set(R(o[0]))
            srcs = o[1:]
            if re.match(r"v_(add|sub|subrev|addc|subb|subbrev)_co_", base) or base.startswith("v_div_scale") or base.startswith("v_mad_u64"):
                self.wr |= R(o[1]); srcs = o[2:]
            for s in srcs: self.rd |= R(s)
            if base.startswith("v_permlane") and "swap" in base:
                self.wr |= R(o[1]); self.rd |= R(o[0])
            if base.startswith("v_fmac") or base.startswith("v_dot2c") or base.startswith("v_writelane") or "dpp" in op or "row_" in self.mods or "quad_perm" in self.mods or "PRESERVE" in self.mods:
                self.rd |= R(o[0])
            if base.startswith("v_cmpx"): self.wr.add(("x", "exec"))
            self.is_dpp = ("dpp" in op) or ("row_" in self.mods) or ("quad_perm" in self.mods) or ("wave_" in self.mods)
            self.is_trans = base in TRANS
        elif op.startswith("buffer_") or op.startswith("global_"):
            self.kind = "vmem"
            lds = " lds" in (" " + self.mods) or "_lds_" in op
            self.ldsdma = lds
            is_store = "store" in op or "atomic" in op
            if op in ("buffer_wbl2", "buffer_inv"): return
            if op.startswith("buffer_"):
                if lds:
                    for s in o: self.rd |= R(s)
                elif is_store:
                    for s in o: self.rd |= R(s)
                    self.storedata = R(o[0]) if ("x3" in op or "x4" in op) else set()
                    if "atomic" in op and "sc0" in self.mods: self.wr = R(o[0])
                else:
                    self.wr = R(o[0])
                    for s in o[1:]: self.rd |= R(s)
            else:
                if lds:
                    for s in o: self.rd |= R(s)
                elif "store" in op:
                    for s in o: self.rd |= R(s)
                    self.storedata = R(o[1]) if ("x3" in op or "x4" in op) else set()
                else:
                    self.wr = R(o[0])
                    for s in o[1:]: self.rd |= R(s)
            if lds: self.rd.add(("x", "m0"))
        elif op.startswith("ds_"):
            self.kind = "ds"
            if "read" in op or "rtn" in op or "permute" in op or "swizzle" in op:
                self.wr = R(o[0])
                for s in o[1:]: self.rd |= R(s)
            else:
                for s in o: self.rd |= R(s)
        elif op.startswith("s_"):
            self.kind = "salu"
            if op.startswith("s_cmp") or op.startswith("s_cbranch") or op in ("s_branch", "s_nop", "s_waitcnt", "s_barrier", "s_endpgm", "s_setprio", "s_sleep") or op.startswith("s_bitcmp"):
                for s in o: self.rd |= R(s)
            else:
                if o: self.wr = set(R(o[0]))
                for s in o[1:]: self.rd |= R(s)
                if "saveexec" in op: self.wr.add(("x", "exec"))

    def states(self):
        if self.op == "s_nop": return int(self.ops[0], 0) + 1
        return 1

XDL_RAW = {4: 8, 8: 12}
XDL_OVL = {4: 6, 8: 10}
XDL_WAR = {4: 3, 8: 7}

def isv(r): return r[0] in ("v", "a")
def iss(r): return r[0] == "s" or r == ("x", "vcc")

def need(p, c):
    n = 0
    pw = p.wr
    if p.kind == "valu":
        vw = {r for r in pw if isv(r)}
        sw = {r for r in pw if iss(r)}
        if c.kind == "mfma" and vw & c.rd: n = max(n, 2)
        if c.kind == "valu":
            if getattr(p, "is_trans", False) and not getattr(c, "is_trans", False) and vw & c.rd: n = max(n, 1)
            if getattr(p, "is_trans", False) and getattr(c, "is_trans", False) and vw & c.rd: n = max(n, 1)
            if sw & c.rd:
                n = max(n, 2)
                if c.base.startswith("v_readlane") or c.base.startswith("v_writelane"): n = max(n, 4)
            if (c.base.startswith("v_readlane") or c.base.startswith("v_readfirstlane")) and vw & c.rd: n = max(n, 1)
            if c.is_dpp and vw & c.rd: n = max(n, 2)
            if c.base.startswith("v_permlane") and vw & c.rd: n = max(n, 2)
            if ("sdwa" in p.op or "op_sel" in p.mods) and vw & (c.rd | c.wr): n = max(n, 1)
            if ("x", "exec") in pw: n = max(n, 5)
        if c.kind == "vmem" and sw & c.rd: n = max(n, 5)
        if c.kind == "mfma" and ("x", "exec") in pw: n = max(n, 4)
        if c.kind == "salu" and sw & c.rd: n = max(n, 1)
    if p.kind == "mfma":
        if c.kind == "mfma":
            if pw & c.srcab: n = max(n, XDL_RAW[p.passes])
            if pw & c.srcc:
                if not (pw == c.srcc and p.passes == c.passes): n = max(n, XDL_OVL[p.passes])
            elif pw & c.wr: n = max(n, XDL_RAW[p.passes])
        elif c.kind in ("valu", "vmem", "ds"):
            if pw & (c.rd | c.wr): n = max(n, XDL_RAW[p.passes])
            if c.kind == "valu" and p.srcc & c.wr: n = max(n, XDL_WAR[p.passes])
    if p.kind == "salu" and ("x", "m0") in pw and c.kind == "vmem" and getattr(c, "ldsdma", False): n = max(n, 1)
    if p.kind == "vmem" and p.storedata and (p.storedata & c.wr):
        n = max(n, 2 if c.kind == "valu" else 1)
    return n

MAXW = 12

def pad_hazards(lines, verbose=False):
    ins = [Ins(l) for l in lines]
    labels = {x.label: i for i, x in enumerate(ins) if x.label}
    preds = {i: [] for i in range(len(ins))}
    for i, x in enumerate(ins):
        x.pad = 0
        nxt = True
        if x.op in ("s_branch", "s_endpgm", "s_setpc_b64"): nxt = False
        if x.op and (x.op == "s_branch" or x.op.startswith("s_cbranch")):
            preds[labels[x.ops[0]]].append(i)
        if nxt and i + 1 < len(ins): preds[i + 1].append(i)
    total = 0
    for i, c in enumerate(ins):
        if not c.op: continue
        worst = 0; why = None
        stack = [(p, 0) for p in preds[i]]
        seen = {}
        while stack:
            j, d = stack.pop()
            if d >= MAXW: continue
            if seen.get(j, 99) <= d: continue
            seen[j] = d
            p = ins[j]
            if p.op:
                nd = need(p, c)
                if nd > d and nd - d > worst:
                    worst = nd - d; why = (p.text.strip(), c.text.strip(), nd, d)
                d2 = d + p.states() + p.pad
            else:
                d2 = d
            for q in preds[j]: stack.append((q, d2))
        if worst:
            c.pad = worst; total += 1
            if verbose: print("pad", worst, why)
    out = []
    for x in ins:
        if x.pad: out.append(f"    s_nop {x.pad-1}")
        out.append(x.text)
    return out, total
```

```python
import sys, math, struct
sys.path.insert(0, "gen")
from asmlib import pad_hazards

NAME = "gated_mix__grouped_kv_mqa__moe_arch_mod__prompt"

WS_QF = 0x000000
WS_OF = 0x400000
WS_KV = 0x800000
WS_G = 0x840000
WS_KEYS = 0x842000
WS_GMAX = 0x844000
WS_IDX = 0x845000
WS_H = 0x848000
WS_YP = 0x860000
WS_SIZE = 0x1000000
OOB = 0x40000000

def f2u(x): return struct.unpack("<I", struct.pack("<f", x))[0]
LOG2E = 1.4426950408889634
QSCALE = LOG2E / math.sqrt(32.0)

class K:
    def __init__(self): self.l = []
    def __call__(self, s):
        for x in s.strip("\n").split("\n"):
            x = x.strip()
            if not x: continue
            self.l.append(x if x.endswith(":") or x.startswith(".") else "    " + x)

def srd(k, d, lo, hi, size):
    k(f"s_mov_b32 s{d}, s{lo}\ns_mov_b32 s{d+1}, s{hi}\ns_mov_b32 s{d+2}, {size:#x}\ns_mov_b32 s{d+3}, 0x20000")

def vr(b, n): return f"v[{b}:{b+n-1}]"

def m32(d, a, b, c=None):
    cc = vr(d, 16) if c is None else (c if isinstance(c, str) else vr(c, 16))
    return f"v_mfma_f32_32x32x16_bf16 {vr(d,16)}, {vr(a,4)}, {vr(b,4)}, {cc}"
def m16(d, a, b, c=None):
    cc = vr(d, 4) if c is None else (c if isinstance(c, str) else vr(c, 4))
    return f"v_mfma_f32_16x16x32_bf16 {vr(d,4)}, {vr(a,4)}, {vr(b,4)}, {cc}"

def header(k, name):
    k(f".globl {name}\n.p2align 8\n.type {name},@function\n{name}:")

def desc(name, vgpr, sgpr=96):
    acc = (vgpr + 3) // 4 * 4
    return f""".amdhsa_kernel {name}
  .amdhsa_next_free_vgpr {vgpr}
  .amdhsa_next_free_sgpr {sgpr}
  .amdhsa_accum_offset {acc}
  .amdhsa_group_segment_fixed_size 0
  .amdhsa_kernarg_size 112
  .amdhsa_user_sgpr_count 2
  .amdhsa_user_sgpr_kernarg_segment_ptr 1
  .amdhsa_system_sgpr_workgroup_id_x 1
.end_amdhsa_kernel"""

K1_STAGE = 28672
K1_SLOTS = 5
K1_RG = K1_STAGE * K1_SLOTS
K1_LDS = K1_RG + 6144

def gen_k1():
    k = K()
    header(k, "k1_kernel")
    k("s_cmp_ge_u32 s2, 256\ns_cbranch_scc1 K1_END")
    k("""s_load_dwordx4 s[36:39], s[0:1], 0
         s_load_dwordx4 s[40:43], s[0:1], 16
         s_load_dwordx2 s[44:45], s[0:1], 48
         s_load_dwordx2 s[46:47], s[0:1], 80
         s_load_dwordx2 s[48:49], s[0:1], 104
         v_lshrrev_b32 v1, 6, v0
         v_and_b32 v0, 63, v0
         v_readfirstlane_b32 s32, v1
         s_and_b32 s33, s2, 31
         s_lshr_b32 s34, s2, 5""")
    k("""s_lshr_b32 s35, s33, 3
         s_lshl_b32 s35, s35, 2
         s_and_b32 s50, s34, 3
         s_add_u32 s35, s35, s50
         s_waitcnt lgkmcnt(0)""")
    srd(k, 8, 36, 37, 0x400000)
    srd(k, 12, 38, 39, 0x200000)
    srd(k, 20, 48, 49, WS_SIZE)
    srd(k, 24, 44, 45, 2048)
    srd(k, 28, 46, 47, 2048)
    k("s_cmp_lt_u32 s34, 2\ns_cselect_b32 s16, s40, s42\ns_cselect_b32 s17, s41, s43\ns_mov_b32 s18, 0x10000\ns_mov_b32 s19, 0x20000")
    k("""v_lshrrev_b32 v2, 5, v0
         v_bfe_u32 v3, v0, 4, 1
         v_lshlrev_b32 v3, 5, v3
         v_and_b32 v4, 3, v0
         v_lshl_add_u32 v3, v4, 3, v3
         v_bfe_u32 v4, v0, 2, 2""")
    for i in range(16): k(f"v_mov_b32 v{16+i}, 0")
    k("s_mov_b32 s51, 0")
    k("s_mov_b32 s52, 0")
    k("s_cmp_eq_u32 s32, 8\ns_cbranch_scc1 K1_W8")
    k("""s_lshr_b32 s53, s32, 2
         s_and_b32 s54, s32, 3""")
    k("""v_lshrrev_b32 v7, 4, v0
         v_lshlrev_b32 v8, 2, v7
         v_and_b32 v9, 15, v0
         v_xor_b32 v9, v9, v8
         v_lshlrev_b32 v9, 4, v9
         v_lshl_add_u32 v5, v7, 11, v9
         s_lshl_b32 s50, s32, 14
         s_lshl_b32 s55, s34, 8
         s_add_u32 s50, s50, s55
         v_add_u32 v5, s50, v5""")
    k("""v_lshrrev_b32 v7, 3, v0
         s_lshl_b32 s50, s32, 3
         v_add_u32 v7, s50, v7
         v_bfe_u32 v8, v7, 1, 3
         v_and_b32 v9, 7, v0
         v_xor_b32 v9, v9, v8
         v_lshlrev_b32 v9, 4, v9
         v_lshl_add_u32 v6, v7, 11, v9
         s_lshl_b32 s50, s33, 17
         v_add_u32 v6, s50, v6""")
    k("""v_lshl_add_u32 v7, v2, 3, v4
         v_xor_b32 v8, s54, v4
         v_lshl_add_u32 v8, v8, 6, v3
         v_lshl_add_u32 v10, v7, 8, v8""")
    xread_base(k, "s53")
    k("s_lshl_b32 s56, s32, 11")
    k(f"s_lshl_b32 s57, s32, 10\ns_add_u32 s57, s57, 16384")
    def dma(stage_sreg, slot_sreg):
        k(f"""s_add_u32 s58, {stage_sreg}, s35
              s_and_b32 s58, s58, 15
              s_lshl_b32 s59, s58, 17
              s_lshl_b32 s60, s58, 7
              s_cmp_lt_u32 {stage_sreg}, 16
              s_cselect_b32 s59, s59, {OOB:#x}
              s_cselect_b32 s60, s60, {OOB:#x}
              s_add_u32 m0, {slot_sreg}, s56
              s_add_u32 s61, s59, 8192
              buffer_load_dwordx4 v5, s[12:15], s59 offen lds
              s_add_u32 m0, m0, 1024
              s_nop 0
              buffer_load_dwordx4 v5, s[12:15], s61 offen lds
              s_add_u32 m0, {slot_sreg}, s57
              s_nop 0
              buffer_load_dwordx4 v6, s[8:11], s60 offen lds""")
    for s in range(K1_SLOTS - 1):
        k(f"s_mov_b32 s62, {s}\ns_mov_b32 s63, {s*K1_STAGE}")
        dma("s62", "s63")
    k(f"s_mov_b32 s63, {(K1_SLOTS-1)*K1_STAGE}")
    k("K1_LOOP:")
    k(f"s_waitcnt vmcnt({3*(K1_SLOTS-2)})\ns_barrier")
    k(f"s_add_u32 s62, s52, {K1_SLOTS-1}")
    dma("s62", "s63")
    k("v_add_u32 v12, s51, v10\nv_add_u32 v13, s51, v11\nv_xor_b32 v14, 32, v13\nv_xor_b32 v15, 64, v13\nv_xor_b32 v9, 96, v13")
    xa = [13, 14, 15, 9]
    for ks in range(4):
        k(f"ds_read_b128 {vr(32+4*ks,4)}, v{xa[ks]}")
        k(f"ds_read_b64_tr_b16 {vr(48+4*ks,2)}, v12 offset:{ks*4096}")
        k(f"ds_read_b64_tr_b16 {vr(50+4*ks,2)}, v12 offset:{ks*4096+1024}")
    for ks in range(4):
        k(f"s_waitcnt lgkmcnt({9-3*ks})")
        k(m32(16, 48+4*ks, 32+4*ks))
    loop_tail(k, "K1_LOOP", K1_STAGE, K1_SLOTS)
    k(f"s_mov_b32 s50, {f2u(QSCALE):#x}")
    for i in range(16): k(f"v_mul_f32 v{16+i}, s50, v{16+i}")
    for i in range(8): k(f"v_cvt_pk_bf16_f32 v{32+i}, v{16+2*i}, v{17+2*i}")
    k(f"""s_lshl_b32 s50, s33, 1
          s_add_u32 s50, s50, s53
          s_lshl_b32 s50, s50, 5
          s_lshl_b32 s55, s34, 2
          s_add_u32 s50, s50, s55
          s_add_u32 s50, s50, s54
          s_lshl_b32 s50, s50, 11
          s_add_u32 s50, s50, {WS_QF}
          v_lshlrev_b32 v5, 4, v0
          buffer_store_dwordx4 v[32:35], v5, s[20:23], s50 offen
          buffer_store_dwordx4 v[36:39], v5, s[20:23], s50 offen offset:1024""")
    k("s_cmp_lg_u32 s32, 0\ns_cbranch_scc1 K1_END")
    k(f"""s_mul_i32 s50, s2, 224
          s_add_u32 s50, s50, {WS_H}
          v_lshlrev_b32 v5, 2, v0
          v_mov_b32 v6, -1
          v_cmp_gt_u32 vcc, 56, v0
          v_mov_b32 v7, {OOB:#x}
          v_cndmask_b32 v7, v7, v5, vcc
          buffer_store_dword v6, v7, s[20:23], s50 offen
          s_cmp_lg_u32 s2, 0
          s_cbranch_scc1 K1_END
          v_mov_b32 v8, 0
          s_mov_b32 s50, {WS_IDX}
          buffer_store_dword v8, v5, s[20:23], s50 offen
          s_endpgm""")
    k("K1_W8:")
    k("s_cmp_ge_u32 s34, 6\ns_cbranch_scc1 K1_END")
    k("s_and_b32 s53, s34, 1")
    xread_base(k, "s53")
    k("v_lshlrev_b32 v5, 4, v0")
    k("s_cmp_ge_u32 s34, 4\ns_cbranch_scc1 K1_RGW")
    k("""v_lshl_add_u32 v7, v2, 3, v4
         v_lshl_add_u32 v10, v7, 6, v3
         v_add_u32 v10, 24576, v10""")
    def dmaE(stage_sreg, slot_sreg):
        k(f"""s_add_u32 s58, {stage_sreg}, s35
              s_and_b32 s58, s58, 15
              s_lshl_b32 s59, s58, 12
              s_cmp_lt_u32 {stage_sreg}, 16
              s_cselect_b32 s59, s59, {OOB:#x}
              s_add_u32 m0, {slot_sreg}, 24576
              s_nop 0""")
        for i in range(4): k(f"buffer_load_dwordx4 v5, s[16:19], s59 offen offset:{i*1024} lds")
    for s in range(K1_SLOTS - 1):
        k(f"s_mov_b32 s62, {s}\ns_mov_b32 s63, {s*K1_STAGE}")
        dmaE("s62", "s63")
    k(f"s_mov_b32 s63, {(K1_SLOTS-1)*K1_STAGE}")
    k("K1_ELOOP:")
    k(f"s_waitcnt vmcnt({4*(K1_SLOTS-2)})\ns_barrier")
    k(f"s_add_u32 s62, s52, {K1_SLOTS-1}")
    dmaE("s62", "s63")
    k("v_add_u32 v12, s51, v10\nv_add_u32 v13, s51, v11\nv_xor_b32 v14, 32, v13\nv_xor_b32 v15, 64, v13\nv_xor_b32 v9, 96, v13")
    for ks in range(4):
        k(f"ds_read_b128 {vr(32+4*ks,4)}, v{xa[ks]}")
        k(f"ds_read_b64_tr_b16 {vr(48+4*ks,2)}, v12 offset:{ks*1024}")
        k(f"ds_read_b64_tr_b16 {vr(50+4*ks,2)}, v12 offset:{ks*1024+256}")
    k("s_waitcnt lgkmcnt(0)")
    k("s_cmp_ge_u32 s34, 2\ns_cbranch_scc1 K1_EV")
    for ks in range(4): k(m32(16, 48+4*ks, 32+4*ks))
    k("s_branch K1_EJ")
    k("K1_EV:")
    for ks in range(4): k(m32(16, 32+4*ks, 48+4*ks))
    k("K1_EJ:")
    loop_tail(k, "K1_ELOOP", K1_STAGE, K1_SLOTS)
    for i in range(8): k(f"v_cvt_pk_bf16_f32 v{32+i}, v{16+2*i}, v{17+2*i}")
    k(f"""s_lshl_b32 s50, s33, 1
          s_add_u32 s50, s50, s53
          s_add_u32 s55, s50, 63
          s_and_b32 s55, s55, 63
          s_lshl_b32 s55, s55, 12
          s_lshl_b32 s50, s50, 12
          s_add_u32 s50, s50, 2048
          s_cmp_ge_u32 s34, 2
          s_cselect_b32 s50, s50, s55
          s_add_u32 s50, s50, {WS_KV}
          buffer_store_dwordx4 v[32:35], v5, s[20:23], s50 offen
          buffer_store_dwordx4 v[36:39], v5, s[20:23], s50 offen offset:1024
          s_endpgm""")
    k("K1_RGW:")
    k(f"""s_mov_b32 m0, {K1_RG}
          s_nop 0
          buffer_load_dwordx4 v5, s[24:27], 0 offen lds
          buffer_load_dwordx4 v5, s[24:27], 0 offen offset:1024 lds
          s_mov_b32 m0, {K1_RG+2048}
          s_nop 0
          buffer_load_dwordx4 v5, s[28:31], 0 offen lds
          buffer_load_dwordx4 v5, s[28:31], 0 offen offset:1024 lds
          v_add_u32 v6, {K1_RG+4096}, v5
          ds_write_b128 v6, v[16:19]
          ds_write_b128 v6, v[16:19] offset:1024
          v_and_b32 v7, 31, v0
          v_min_u32 v7, 2, v7
          v_lshlrev_b32 v7, 11, v7
          v_lshl_add_u32 v10, v2, 4, v7
          v_add_u32 v10, {K1_RG}, v10
          s_waitcnt vmcnt(0) lgkmcnt(0)""")
    k("K1_RLOOP:")
    k("s_barrier")
    k("""s_add_u32 s58, s52, s35
         s_and_b32 s58, s58, 15
         s_lshl_b32 s58, s58, 7""")
    k("v_add_u32 v12, s58, v10\nv_add_u32 v13, s51, v11\nv_xor_b32 v14, 32, v13\nv_xor_b32 v15, 64, v13\nv_xor_b32 v9, 96, v13")
    for ks in range(4):
        k(f"ds_read_b128 {vr(32+4*ks,4)}, v{xa[ks]}")
        k(f"ds_read_b128 {vr(48+4*ks,4)}, v12 offset:{ks*32}")
    k("s_waitcnt lgkmcnt(0)")
    for ks in range(4): k(m32(16, 48+4*ks, 32+4*ks))
    loop_tail(k, "K1_RLOOP", K1_STAGE, K1_SLOTS)
    k(f"""s_lshl_b32 s50, s33, 1
          s_add_u32 s50, s50, s53
          s_lshl_b32 s55, s50, 5
          v_add_u32 v6, s55, v0
          v_cvt_pk_bf16_f32 v32, v16, v16
          v_and_b32 v32, 0xffff, v32
          v_xor_b32 v33, 0xffff, v32
          v_or_b32 v34, 0x8000, v32
          v_cmp_lt_u32 vcc, 0x7fff, v32
          v_cndmask_b32 v32, v34, v33, vcc
          v_sub_u32 v33, 0xffff, v6
          v_lshl_or_b32 v32, v32, 16, v33
          v_mul_f32 v35, {f2u(-LOG2E):#x}, v17
          v_exp_f32 v35, v35
          v_add_f32 v35, 1.0, v35
          v_rcp_f32 v35, v35
          v_lshlrev_b32 v6, 2, v6
          v_cmp_gt_u32 vcc, 32, v0
          v_mov_b32 v7, {OOB:#x}
          v_cndmask_b32 v6, v7, v6, vcc
          s_mov_b32 s55, {WS_KEYS}
          buffer_store_dword v32, v6, s[20:23], s55 offen
          s_mov_b32 s55, {WS_G}
          buffer_store_dword v35, v6, s[20:23], s55 offen
          v_mov_b32 v36, v32
          v_max_u32_dpp v36, v36, v36 row_shr:1 row_mask:0xf bank_mask:0xf
          v_max_u32_dpp v36, v36, v36 row_shr:2 row_mask:0xf bank_mask:0xf
          v_max_u32_dpp v36, v36, v36 row_shr:4 row_mask:0xf bank_mask:0xf
          v_max_u32_dpp v36, v36, v36 row_shr:8 row_mask:0xf bank_mask:0xf
          v_max_u32_dpp v36, v36, v36 row_bcast:15 row_mask:0xa bank_mask:0xf
          v_cmp_eq_u32 vcc, 31, v0
          v_mov_b32 v8, 0
          v_cndmask_b32 v8, v7, v8, vcc
          s_lshl_b32 s50, s50, 2
          s_add_u32 s50, s50, {WS_GMAX}
          buffer_store_dword v36, v8, s[20:23], s50 offen""")
    k("K1_END:\ns_endpgm")
    return k.l

def xread_base(k, th):
    k(f"""v_and_b32 v7, 31, v0
          s_lshl_b32 s50, {th}, 5
          v_add_u32 v7, s50, v7
          v_bfe_u32 v8, v7, 1, 3
          v_xor_b32 v8, v8, v2
          v_lshlrev_b32 v8, 4, v8
          v_lshl_add_u32 v11, v7, 7, v8
          v_add_u32 v11, 16384, v11""")

def loop_tail(k, label, stage, slots):
    k(f"""s_mov_b32 s63, s51
          s_add_u32 s51, s51, {stage}
          s_cmp_eq_u32 s51, {stage*slots}
          s_cselect_b32 s51, 0, s51
          s_add_u32 s52, s52, 1
          s_cmp_lt_u32 s52, 16
          s_cbranch_scc1 {label}""")

K2_GATE = 65536
K2_UP = 98304
K2_ACC = 131072
K2_LDS = K2_ACC + 2048
Q0, Q1 = 8, 12
CM = 16
SA, SB = 32, 48
P = 64
O = 72
L = 88
ONES = 92
KF = 96
VF = 104
FA = 112
FB = 128
FC = 144
FT = 152
K2_VGPR = 168

def attn_iter(k, i, S, Sn, first_wait=True):
    u = ((i + 1) & 7) * 4096
    E = lambda j: f"v_exp_f32 v{S+j}, v{S+j}"
    C = lambda j: f"v_cvt_pk_bf16_f32 v{P+j}, v{S+2*j}, v{S+2*j+1}"
    if first_wait: k("s_waitcnt lgkmcnt(2)")
    k(m32(Sn, KF, Q0, CM))
    for j in range(4): k(E(j))
    k(m32(Sn, KF+4, Q1))
    k(f"ds_read_b128 {vr(KF,4)}, v1 offset:{u}")
    k(f"ds_read_b128 {vr(KF+4,4)}, v1 offset:{u+1024}")
    k(C(0)); k(C(1))
    for j in range(4, 8): k(E(j))
    k(C(2)); k(C(3))
    k(E(8)); k(E(9))
    k("s_waitcnt lgkmcnt(2)")
    k(m32(O, VF, P))
    k(f"ds_read_b128 {vr(VF,4)}, v1 offset:{u+2048}")
    k(E(10)); k(E(11))
    k(C(4)); k(C(5))
    k(m16(L, ONES, P))
    for j in range(12, 16): k(E(j))
    k(C(6)); k(C(7))
    k("s_nop 1")
    k(m32(O, VF+4, P+4))
    k(f"ds_read_b128 {vr(VF+4,4)}, v1 offset:{u+3072}")
    k(m16(L, ONES, P+4))

def wave_max_u32(k, v):
    k(f"""v_max_u32_dpp v{v}, v{v}, v{v} row_shr:1 row_mask:0xf bank_mask:0xf
          v_max_u32_dpp v{v}, v{v}, v{v} row_shr:2 row_mask:0xf bank_mask:0xf
          v_max_u32_dpp v{v}, v{v}, v{v} row_shr:4 row_mask:0xf bank_mask:0xf
          v_max_u32_dpp v{v}, v{v}, v{v} row_shr:8 row_mask:0xf bank_mask:0xf
          v_max_u32_dpp v{v}, v{v}, v{v} row_bcast:15 row_mask:0xa bank_mask:0xf
          v_max_u32_dpp v{v}, v{v}, v{v} row_bcast:31 row_mask:0xc bank_mask:0xf""")

SPIN = 200000

def gen_k2():
    k = K()
    header(k, "k2_kernel")
    k("s_cmp_ge_u32 s2, 256\ns_cbranch_scc1 K2_END")
    k("""s_load_dwordx2 s[36:37], s[0:1], 0
         s_load_dwordx4 s[40:43], s[0:1], 56
         s_load_dwordx2 s[44:45], s[0:1], 72
         s_load_dwordx2 s[48:49], s[0:1], 104
         v_lshrrev_b32 v1, 6, v0
         v_lshlrev_b32 v3, 2, v0
         v_and_b32 v0, 63, v0
         v_readfirstlane_b32 s32, v1
         s_and_b32 s33, s2, 31
         s_lshr_b32 s34, s2, 5
         v_lshlrev_b32 v2, 4, v0
         v_mov_b32 v1, v2
         v_mov_b32 v4, 0""")
    k(f"v_add_u32 v3, {K2_ACC}, v3\nds_write_b32 v3, v4")
    k("""s_sub_u32 s50, s2, 32
         s_and_b32 s51, s50, 7
         s_lshr_b32 s52, s50, 3
         s_lshr_b32 s53, s52, 2
         s_lshl_b32 s53, s53, 3
         s_add_u32 s53, s53, s51
         s_lshl_b32 s53, s53, 2
         s_and_b32 s52, s52, 3
         s_add_u32 s35, s53, s52
         s_cmp_ge_u32 s2, 32
         s_cselect_b32 s35, s35, 0
         s_cselect_b32 s64, 1, 0""")
    k("s_waitcnt lgkmcnt(0)")
    srd(k, 8, 36, 37, 0x400000)
    srd(k, 12, 40, 41, 0x700000)
    srd(k, 16, 42, 43, 0x700000)
    srd(k, 24, 44, 45, 0x700000)
    srd(k, 20, 48, 49, WS_SIZE)
    k(f"s_add_u32 s28, s48, {WS_KV}\ns_addc_u32 s29, s49, 0\ns_mov_b32 s30, 0x40000\ns_mov_b32 s31, 0x20000")
    k(f"""s_cmp_eq_u32 s64, 1
          s_cselect_b32 s14, s14, 0
          s_cselect_b32 s18, s18, 0
          s_cselect_b32 s26, s26, 0
          s_mov_b32 s68, s48
          s_mov_b32 s69, s49
          s_cselect_b32 s70, {WS_SIZE:#x}, 0
          s_mov_b32 s71, 0x20000""")
    k("""s_lshr_b32 s50, s32, 2
         s_lshl_b32 s51, s33, 1
         s_add_u32 s50, s50, s51
         s_lshl_b32 s50, s50, 5
         s_lshl_b32 s51, s34, 2
         s_add_u32 s50, s50, s51
         s_and_b32 s51, s32, 3
         s_add_u32 s50, s50, s51
         s_lshl_b32 s54, s50, 11
         s_lshl_b32 s55, s32, 12""")
    k(f"""buffer_load_dwordx4 {vr(Q0,4)}, v2, s[20:23], s54 offen
          buffer_load_dwordx4 {vr(Q1,4)}, v2, s[20:23], s54 offen offset:1024
          s_mov_b32 s50, {63*4096}
          buffer_load_dwordx4 {vr(KF,4)}, v2, s[28:31], s50 offen
          buffer_load_dwordx4 {vr(KF+4,4)}, v2, s[28:31], s50 offen offset:1024""")
    def kvdma(soff, ldsbase):
        k(f"s_mov_b32 m0, {ldsbase}\ns_nop 0")
        for i in range(4): k(f"buffer_load_dwordx4 v2, s[28:31], {soff} offen offset:{i*1024} lds")
    kvdma("s55", "s55")
    k("s_or_b32 s65, s2, s32\ns_cmp_lg_u32 s65, 0\ns_cbranch_scc1 K2_NOTOP0")
    k(f"s_mov_b32 m0, {K2_UP}\ns_mov_b32 s50, {WS_KEYS}")
    for i in range(4): k(f"buffer_load_dwordx4 v2, s[20:23], s50 offen offset:{i*1024} lds")
    k(f"s_mov_b32 m0, {K2_UP+4096}\ns_mov_b32 s50, {WS_KEYS+4096}")
    for i in range(4): k(f"buffer_load_dwordx4 v2, s[20:23], s50 offen offset:{i*1024} lds")
    k(f"v_lshlrev_b32 v3, 2, v0\ns_mov_b32 s50, {WS_GMAX}\nbuffer_load_dword v{FT}, v3, s[20:23], s50 offen")
    k("s_waitcnt vmcnt(0)")
    k("K2_NOTOP0:")
    k("s_add_u32 s56, s55, 32768")
    kvdma("s56", "s56")
    k(f"""v_lshrrev_b32 v3, 2, v0
          v_lshrrev_b32 v4, 4, v0
          v_xor_b32 v3, v3, v4
          v_and_b32 v3, 1, v3
          v_cmp_eq_u32 vcc, 0, v3
          v_mov_b32 v4, 0x3f803f80
          v_cndmask_b32 v{ONES}, 0, v4, vcc
          v_mov_b32 v{ONES+1}, v{ONES}
          v_mov_b32 v{ONES+2}, v{ONES}
          v_mov_b32 v{ONES+3}, v{ONES}""")
    for i in range(16): k(f"v_mov_b32 v{O+i}, 0")
    for i in range(4): k(f"v_mov_b32 v{L+i}, 0")
    k("""v_lshrrev_b32 v3, 1, v0
         v_mul_u32_u24 v3, 7168, v3
         v_and_b32 v4, 1, v0
         v_lshl_add_u32 v5, v4, 4, v3
         s_lshl_b32 s50, s35, 5
         s_mul_i32 s51, s32, 917504
         s_add_u32 s50, s50, s51
         v_add_u32 v5, s50, v5""")
    def ffndma(n):
        base = K2_GATE if n < 4 else K2_UP
        s = "s[12:15]" if n < 4 else "s[16:19]"
        k(f"s_add_u32 m0, s55, {base + (n&3)*1024}\ns_mov_b32 s50, {(n&3)*32*7168}")
        k(f"buffer_load_dwordx4 v5, {s}, s50 offen lds")
    k("s_waitcnt vmcnt(8)")
    k(m32(SA, KF, Q0, "0")); k(m32(SA, KF+4, Q1))
    ffndma(0); ffndma(1)
    k(f"v_max3_f32 v3, v{SA}, v{SA+1}, v{SA+2}")
    for j in range(3, 15, 2): k(f"v_max3_f32 v3, v3, v{SA+j}, v{SA+j+1}")
    k(f"v_max_f32 v3, v3, v{SA+15}")
    k("v_mov_b32 v4, v3\nv_permlane32_swap_b32 v3, v4\nv_max_f32 v3, v3, v4")
    k(f"v_sub_f32 v{CM}, 0, v3")
    for j in range(1, 16): k(f"v_mov_b32 v{CM+j}, v{CM}")
    for j in range(16): k(f"v_sub_f32 v{SA+j}, v{SA+j}, v3")
    k("s_waitcnt vmcnt(6) lgkmcnt(0)\ns_barrier")
    k(f"""ds_read_b128 {vr(KF,4)}, v1
          ds_read_b128 {vr(KF+4,4)}, v1 offset:1024
          ds_read_b128 {vr(VF,4)}, v1 offset:2048
          ds_read_b128 {vr(VF+4,4)}, v1 offset:3072""")
    k("s_cmp_lg_u32 s65, 0\ns_cbranch_scc1 K2_NOTOP")
    T = FT
    k(f"v_lshrrev_b32 v{T+3}, 3, v0\nv_mov_b32 v{T+2}, 0")
    for r in range(8):
        k(f"v_mov_b32 v{T+1}, v{T}")
        wave_max_u32(k, T+1)
        k(f"""v_readlane_b32 s50, v{T+1}, 63
              v_cmp_eq_u32 vcc, s50, v{T}
              v_cndmask_b32 v{T}, v{T}, 0, vcc
              v_mov_b32 v{T+4}, s50
              v_cmp_eq_u32 vcc, {r}, v{T+3}
              v_cndmask_b32 v{T+2}, v{T+2}, v{T+4}, vcc""")
    k(f"""v_and_b32 v{T+2}, 0xffff, v{T+2}
          v_sub_u32 v{T+2}, 0xffff, v{T+2}
          v_lshrrev_b32 v{T+2}, 5, v{T+2}
          v_and_b32 v{T+4}, 7, v0
          v_lshlrev_b32 v{T+4}, 4, v{T+4}
          v_lshl_add_u32 v{T+2}, v{T+2}, 7, v{T+4}
          v_add_u32 v{T+2}, {K2_UP}, v{T+2}
          ds_read_b128 {vr(T+8,4)}, v{T+2}
          s_waitcnt lgkmcnt(0)""")
    a, b, c, d = T+8, T+9, T+10, T+11
    def ce(x, y):
        k(f"v_max_u32 v{T+5}, v{x}, v{y}\nv_min_u32 v{y}, v{x}, v{y}\nv_mov_b32 v{x}, v{T+5}")
    ce(a, b); ce(c, d); ce(a, c); ce(b, d); ce(b, c)
    k(f"v_mov_b32 v{T+2}, 0")
    for r in range(8):
        k(f"v_mov_b32 v{T+1}, v{a}")
        wave_max_u32(k, T+1)
        k(f"""v_readlane_b32 s50, v{T+1}, 63
              v_cmp_eq_u32 vcc, s50, v{a}
              v_cndmask_b32 v{a}, v{a}, v{b}, vcc
              v_cndmask_b32 v{b}, v{b}, v{c}, vcc
              v_cndmask_b32 v{c}, v{c}, v{d}, vcc
              v_cndmask_b32 v{d}, v{d}, 0, vcc
              v_writelane_b32 v{T+2}, s50, {r}""")
    k(f"""v_lshlrev_b32 v{T+3}, 2, v0
          v_mov_b32 v{T+4}, {OOB:#x}
          v_cmp_gt_u32 vcc, 8, v0
          v_cndmask_b32 v{T+3}, v{T+4}, v{T+3}, vcc
          s_mov_b32 s50, {WS_IDX}
          s_waitcnt vmcnt(0)
          buffer_store_dword v{T+2}, v{T+3}, s[20:23], s50 offen sc0 sc1
          s_waitcnt vmcnt(0)""")
    k("K2_NOTOP:")
    k("s_mov_b32 s57, 0")
    k("s_mov_b32 s58, 2")
    k(".p2align 6")
    k("K2_LOOP:")
    bufs = [SA, SB]
    for i in range(7):
        attn_iter(k, i, bufs[i & 1], bufs[(i + 1) & 1])
    k("s_cmp_eq_u32 s57, 0\ns_cbranch_scc1 K2_W2")
    k("s_cmp_eq_u32 s57, 1\ns_cbranch_scc1 K2_W3")
    k("s_cmp_eq_u32 s57, 2\ns_cbranch_scc1 K2_W3")
    k("s_cmp_eq_u32 s57, 5\ns_cbranch_scc1 K2_W4")
    k("s_waitcnt vmcnt(0)\ns_branch K2_WJ")
    k("K2_W2:\ns_waitcnt vmcnt(2)\ns_branch K2_WJ")
    k("K2_W3:\ns_waitcnt vmcnt(3)\ns_branch K2_WJ")
    k("K2_W4:\ns_waitcnt vmcnt(4)")
    k("K2_WJ:")
    k("s_waitcnt lgkmcnt(0)\ns_barrier")
    k("""s_add_u32 s50, s57, 2
         s_lshl_b32 s50, s50, 15
         s_add_u32 s50, s50, s55
         s_and_b32 s51, s50, 0xffff""")
    kvdma("s50", "s51")
    k("v_xor_b32 v1, 0x8000, v1")
    for p in range(7):
        k(f"s_cmp_eq_u32 s57, {p}\ns_cbranch_scc1 K2_B{p+1}")
    k("K2_BJ:")
    attn_iter(k, 7, bufs[1], bufs[0], first_wait=False)
    k("s_add_u32 s57, s57, 1\ns_cmp_lt_u32 s57, 8\ns_cbranch_scc1 K2_LOOP")
    k("s_waitcnt lgkmcnt(0)")
    k(f"v_mov_b32 v3, 0x5d800000\nv_cmp_nlt_f32 vcc, v{L}, v3\ns_mov_b64 s[60:61], vcc")
    k(f"v_add_f32 v4, abs(v{O}), abs(v{O+1})")
    for j in range(2, 16): k(f"v_add_f32 v4, v4, abs(v{O+j})")
    k("v_mov_b32 v3, 0x7f000000\nv_cmp_nlt_f32 vcc, v4, v3\ns_or_b64 s[60:61], s[60:61], vcc")
    k("s_cmp_lg_u64 s[60:61], 0\ns_cbranch_scc1 K2_SLOW")
    k("K2_FIN:")
    k(f"v_rcp_f32 v3, v{L}")
    for j in range(16): k(f"v_mul_f32 v{O+j}, v{O+j}, v3")
    for j in range(8): k(f"v_cvt_pk_bf16_f32 v{P+j}, v{O+2*j}, v{O+2*j+1}")
    k(f"""s_add_u32 s50, s54, {WS_OF}
          buffer_store_dwordx4 {vr(P,4)}, v2, s[20:23], s50 offen
          buffer_store_dwordx4 {vr(P+4,4)}, v2, s[20:23], s50 offen offset:1024""")
    k("K2_END:\ns_endpgm")

    k("K2_B1:")
    ffndma(2); ffndma(3); ffndma(4)
    k("s_branch K2_BJ")
    k("K2_B2:")
    k(f"""v_and_b32 v3, 7, v0
          v_lshlrev_b32 v3, 2, v3
          s_mov_b32 s50, {WS_IDX}
          buffer_load_dword v{FT}, v3, s[20:23], s50 offen sc0 sc1""")
    ffndma(5); ffndma(6); ffndma(7)
    k("s_branch K2_BJ")
    k("K2_B3:")
    k(f"s_mov_b32 s59, {SPIN}")
    k("K2_B3L:")
    k(f"""v_cmp_eq_u32 vcc, 0, v{FT}
          s_cbranch_vccz K2_B3G
          s_sub_u32 s59, s59, 1
          s_cmp_eq_u32 s59, 0
          s_cbranch_scc1 K2_B3G
          s_sleep 8
          v_and_b32 v3, 7, v0
          v_lshlrev_b32 v3, 2, v3
          s_mov_b32 s50, {WS_IDX}
          buffer_load_dword v{FT}, v3, s[20:23], s50 offen sc0 sc1
          s_waitcnt vmcnt(0)
          s_branch K2_B3L""")
    k("K2_B3G:")
    k(f"""v_and_b32 v3, 0xffff, v{FT}
          v_sub_u32 v3, 0xffff, v3
          v_and_b32 v3, 2047, v3
          v_lshrrev_b32 v4, 4, v0
          v_lshlrev_b32 v4, 4, v4
          v_lshl_add_u32 v3, v3, 11, v4
          v_and_b32 v4, 8, v0
          v_cmp_eq_u32 vcc, 0, v4
          v_mov_b32 v4, {OOB:#x}
          v_cndmask_b32 v3, v4, v3, vcc
          s_lshl_b32 s50, s32, 8""")
    for ks in range(4): k(f"buffer_load_dwordx4 {vr(FA+4*ks,4)}, v3, s[8:11], s50 offen offset:{ks*64}")
    k("s_branch K2_BJ")
    k("K2_B4:")
    k("s_cmp_eq_u32 s64, 0\ns_cbranch_scc1 K2_BJ")
    k(f"""v_lshrrev_b32 v3, 4, v0
          v_bfe_u32 v4, v0, 2, 2
          v_lshl_add_u32 v3, v3, 3, v4
          v_and_b32 v4, 3, v0
          v_lshlrev_b32 v4, 3, v4
          v_lshl_add_u32 v3, v3, 5, v4
          s_add_u32 s50, s55, {K2_GATE}
          v_add_u32 v3, s50, v3""")
    for half, acc in ((0, FC), (32768, FC+4)):
        for ks in range(4):
            k(f"ds_read_b64_tr_b16 {vr(FB+4*ks,2)}, v3 offset:{half+ks*1024}")
            k(f"ds_read_b64_tr_b16 {vr(FB+4*ks+2,2)}, v3 offset:{half+ks*1024+128}")
        k("s_waitcnt lgkmcnt(0)")
        for ks in range(4):
            k(m16(acc, FA+4*ks, FB+4*ks, "0" if ks == 0 else None))
    k(f"""v_lshrrev_b32 v3, 4, v0
          v_lshlrev_b32 v3, 8, v3
          v_and_b32 v4, 15, v0
          v_lshl_add_u32 v3, v4, 2, v3
          v_add_u32 v3, {K2_ACC}, v3""")
    for r in range(4): k(f"ds_add_f32 v3, v{FC+r} offset:{r*64}")
    for r in range(4): k(f"ds_add_f32 v3, v{FC+4+r} offset:{1024+r*64}")
    k("s_waitcnt lgkmcnt(0)")
    k("s_branch K2_BJ")
    k("K2_B5:")
    k("s_cmp_lg_u32 s32, 0\ns_cbranch_scc1 K2_B5D")
    k(f"""v_lshlrev_b32 v3, 3, v0
          v_add_u32 v3, {K2_ACC}, v3
          ds_read_b64 {vr(FC,2)}, v3
          ds_read_b64 {vr(FC+2,2)}, v3 offset:1024
          s_waitcnt lgkmcnt(0)""")
    for j in range(2):
        k(f"""v_mul_f32 v{FC+4+j}, {f2u(-LOG2E):#x}, v{FC+j}
              v_exp_f32 v{FC+4+j}, v{FC+4+j}
              v_add_f32 v{FC+4+j}, 1.0, v{FC+4+j}
              v_rcp_f32 v{FC+4+j}, v{FC+4+j}
              v_mul_f32 v{FC+4+j}, v{FC+4+j}, v{FC+j}
              v_mul_f32 v{FC+4+j}, v{FC+4+j}, v{FC+2+j}""")
    k(f"""v_cvt_pk_bf16_f32 v{FC+6}, v{FC+4}, v{FC+5}
          v_cmp_eq_u32 vcc, -1, v{FC+6}
          v_mov_b32 v4, 0x7fc07fc0
          v_cndmask_b32 v{FC+6}, v{FC+6}, v4, vcc
          v_lshrrev_b32 v3, 3, v0
          v_mul_u32_u24 v3, 7168, v3
          v_and_b32 v4, 7, v0
          v_lshl_add_u32 v3, v4, 2, v3
          s_lshl_b32 s50, s35, 5
          s_add_u32 s50, s50, {WS_H}
          buffer_store_dword v{FC+6}, v3, s[68:71], s50 offen sc0 sc1""")
    k("K2_B5D:")
    k(f"""v_lshrrev_b32 v3, 4, v0
          v_and_b32 v4, 15, v0
          v_lshlrev_b32 v4, 4, v4
          v_lshl_add_u32 v3, v3, 11, v4
          s_lshr_b32 s50, s35, 3
          s_lshl_b32 s50, s50, 18
          s_and_b32 s51, s35, 7
          s_lshl_b32 s51, s51, 8
          s_add_u32 s50, s50, s51
          s_lshl_b32 s51, s32, 15
          s_add_u32 s50, s50, s51""")
    for i in range(4):
        k(f"s_add_u32 m0, s55, {K2_GATE + i*1024}\ns_add_u32 s51, s50, {i*8192}")
        k("buffer_load_dwordx4 v3, s[24:27], s51 offen lds")
    k("s_branch K2_BJ")
    def hloads():
        k(f"""v_and_b32 v3, 7, v0
              v_mul_u32_u24 v3, 7168, v3
              v_lshrrev_b32 v4, 4, v0
              v_lshl_add_u32 v3, v4, 4, v3
              v_and_b32 v4, 8, v0
              v_cmp_eq_u32 vcc, 0, v4
              v_mov_b32 v4, {OOB:#x}
              v_cndmask_b32 v3, v4, v3, vcc
              s_lshr_b32 s50, s35, 3
              s_lshl_b32 s50, s50, 8
              s_add_u32 s50, s50, {WS_H}""")
        for ks in range(4): k(f"buffer_load_dwordx4 {vr(FA+4*ks,4)}, v3, s[68:71], s50 offen offset:{ks*64} sc0 sc1")
    k("K2_B6:")
    hloads()
    k("s_branch K2_BJ")
    k("K2_B7:")
    k("s_cmp_eq_u32 s64, 0\ns_cbranch_scc1 K2_BJ")
    k(f"s_mov_b32 s59, {SPIN}")
    k("K2_B7L:")
    k(f"v_max3_u32 v3, v{FA}, v{FA+1}, v{FA+2}")
    for j in range(3, 15, 2): k(f"v_max3_u32 v3, v3, v{FA+j}, v{FA+j+1}")
    k(f"v_max_u32 v3, v3, v{FA+15}")
    k(f"""v_cmp_eq_u32 vcc, -1, v3
          s_cbranch_vccz K2_B7G
          s_sub_u32 s59, s59, 1
          s_cmp_eq_u32 s59, 0
          s_cbranch_scc1 K2_B7G
          s_sleep 8""")
    hloads()
    k("s_waitcnt vmcnt(0)\ns_branch K2_B7L")
    k("K2_B7G:")
    k(f"""v_lshrrev_b32 v3, 4, v0
          v_bfe_u32 v4, v0, 2, 2
          v_lshl_add_u32 v3, v3, 3, v4
          v_and_b32 v4, 3, v0
          v_lshlrev_b32 v4, 3, v4
          v_lshl_add_u32 v3, v3, 8, v4
          s_lshl_b32 s50, s32, 5
          s_add_u32 s50, s50, {K2_GATE}
          v_add_u32 v3, s50, v3""")
    for ks in range(4):
        k(f"ds_read_b64_tr_b16 {vr(FB+4*ks,2)}, v3 offset:{ks*8192}")
        k(f"ds_read_b64_tr_b16 {vr(FB+4*ks+2,2)}, v3 offset:{ks*8192+1024}")
    k("s_waitcnt lgkmcnt(0)")
    for ks in range(4): k(m16(FC, FB+4*ks, FA+4*ks, "0" if ks == 0 else None))
    k(f"""v_and_b32 v3, 7, v0
          v_lshlrev_b32 v3, 12, v3
          v_lshrrev_b32 v4, 4, v0
          v_lshl_add_u32 v3, v4, 4, v3
          v_and_b32 v4, 8, v0
          v_cmp_eq_u32 vcc, 0, v4
          v_mov_b32 v4, {OOB:#x}
          v_cndmask_b32 v3, v4, v3, vcc
          s_lshr_b32 s50, s35, 3
          s_lshl_b32 s50, s50, 15
          s_and_b32 s51, s35, 7
          s_lshl_b32 s51, s51, 9
          s_add_u32 s50, s50, s51
          s_lshl_b32 s51, s32, 6
          s_add_u32 s50, s50, s51
          s_add_u32 s50, s50, {WS_YP}
          buffer_store_dwordx4 {vr(FC,4)}, v3, s[68:71], s50 offen""")
    k("s_branch K2_BJ")

    k("K2_SLOW:")
    k("v_mov_b32 v6, 0xff800000")
    for i in range(16): k(f"v_mov_b32 v{O+i}, 0")
    for i in range(4): k(f"v_mov_b32 v{L+i}, 0")
    k("s_mov_b32 s57, 0")
    k("K2_SL:")
    k(f"""s_add_u32 s50, s57, 63
          s_and_b32 s50, s50, 63
          s_lshl_b32 s50, s50, 12
          s_lshl_b32 s51, s57, 12
          buffer_load_dwordx4 {vr(KF,4)}, v2, s[28:31], s50 offen
          buffer_load_dwordx4 {vr(KF+4,4)}, v2, s[28:31], s50 offen offset:1024
          buffer_load_dwordx4 {vr(VF,4)}, v2, s[28:31], s51 offen offset:2048
          buffer_load_dwordx4 {vr(VF+4,4)}, v2, s[28:31], s51 offen offset:3072
          s_waitcnt vmcnt(0)""")
    k(m32(SA, KF, Q0, "0")); k(m32(SA, KF+4, Q1))
    k(f"v_max3_f32 v3, v{SA}, v{SA+1}, v{SA+2}")
    for j in range(3, 15, 2): k(f"v_max3_f32 v3, v3, v{SA+j}, v{SA+j+1}")
    k(f"v_max_f32 v3, v3, v{SA+15}")
    k("v_mov_b32 v4, v3\nv_permlane32_swap_b32 v3, v4\nv_max3_f32 v3, v3, v4, v6")
    k("v_sub_f32 v4, v6, v3\nv_exp_f32 v4, v4\nv_mov_b32 v6, v3")
    for j in range(16): k(f"v_mul_f32 v{O+j}, v{O+j}, v4")
    for j in range(4): k(f"v_mul_f32 v{L+j}, v{L+j}, v4")
    for j in range(16): k(f"v_sub_f32 v{SA+j}, v{SA+j}, v3\nv_exp_f32 v{SA+j}, v{SA+j}")
    for j in range(8): k(f"v_cvt_pk_bf16_f32 v{P+j}, v{SA+2*j}, v{SA+2*j+1}")
    k(m32(O, VF, P)); k(m32(O, VF+4, P+4)); k(m16(L, ONES, P)); k(m16(L, ONES, P+4))
    k("s_add_u32 s57, s57, 1\ns_cmp_lt_u32 s57, 64\ns_cbranch_scc1 K2_SL")
    k("s_branch K2_FIN")
    return k.l

K3_STAGE = 24576
K3_SLOTS = 6
K3_LDS = K3_STAGE * K3_SLOTS

def gen_k3():
    k = K()
    header(k, "k3_kernel")
    k("s_cmp_ge_u32 s2, 256\ns_cbranch_scc1 K3_END")
    k("""s_load_dwordx2 s[36:37], s[0:1], 0
         s_load_dwordx2 s[38:39], s[0:1], 32
         s_load_dwordx2 s[40:41], s[0:1], 88
         s_load_dwordx2 s[48:49], s[0:1], 104
         v_lshrrev_b32 v1, 6, v0
         v_and_b32 v0, 63, v0
         v_readfirstlane_b32 s32, v1
         s_and_b32 s33, s2, 31
         s_lshr_b32 s34, s2, 5
         s_lshr_b32 s35, s33, 3
         s_lshl_b32 s35, s35, 2
         s_and_b32 s50, s34, 3
         s_add_u32 s35, s35, s50
         s_waitcnt lgkmcnt(0)""")
    srd(k, 8, 36, 37, 0x400000)
    srd(k, 12, 38, 39, 0x200000)
    srd(k, 16, 40, 41, 0x400000)
    srd(k, 20, 48, 49, WS_SIZE)
    k(f"s_add_u32 s50, s48, {WS_IDX}\ns_addc_u32 s51, s49, 0\ns_load_dwordx8 s[72:79], s[50:51], 0")
    k("""v_lshrrev_b32 v2, 5, v0
         v_bfe_u32 v3, v0, 4, 1
         v_lshlrev_b32 v3, 5, v3
         v_and_b32 v4, 3, v0
         v_lshl_add_u32 v3, v4, 3, v3
         v_bfe_u32 v4, v0, 2, 2
         s_lshr_b32 s53, s32, 2
         s_and_b32 s54, s32, 3""")
    k("""v_lshrrev_b32 v7, 4, v0
         v_lshlrev_b32 v8, 2, v7
         v_and_b32 v9, 15, v0
         v_xor_b32 v9, v9, v8
         v_lshlrev_b32 v9, 4, v9
         v_lshl_add_u32 v5, v7, 11, v9
         s_lshl_b32 s50, s32, 14
         s_lshl_b32 s55, s34, 8
         s_add_u32 s50, s50, s55
         v_add_u32 v5, s50, v5""")
    k(f"""s_lshl_b32 s50, s33, 1
          s_add_u32 s50, s50, s53
          s_lshl_b32 s66, s50, 5
          s_lshl_b32 s50, s50, 16
          s_lshl_b32 s55, s54, 10
          s_add_u32 s50, s50, s55
          s_add_u32 s50, s50, {WS_OF}
          v_lshlrev_b32 v6, 4, v0
          s_lshl_b32 s55, s53, 12
          s_add_u32 s55, s55, 16384
          v_add_u32 v11, s55, v6
          v_add_u32 v6, s50, v6""")
    k("""v_lshl_add_u32 v7, v2, 2, v4
         v_xor_b32 v8, s54, v4
         v_lshl_add_u32 v8, v8, 6, v3
         v_lshl_add_u32 v10, v7, 8, v8""")
    k("s_lshl_b32 s56, s32, 11")
    k(f"s_lshl_b32 s57, s32, 10\ns_add_u32 s57, s57, 16384")
    k(f"""v_and_b32 v7, 31, v0
          v_add_u32 v7, s66, v7
          v_lshlrev_b32 v8, 2, v7
          v_mov_b32 v15, v7
          v_lshlrev_b32 v7, 11, v7
          v_lshl_add_u32 v7, v2, 3, v7
          s_lshl_b32 s50, s34, 8
          s_lshl_b32 s55, s54, 6
          s_add_u32 s67, s50, s55
          s_mov_b32 s50, {WS_G}
          buffer_load_dword v72, v8, s[20:23], s50 offen""")
    for g in range(4): k(f"buffer_load_dwordx2 {vr(64+2*g,2)}, v7, s[8:11], s67 offen offset:{g*16}")
    for i in range(16): k(f"v_mov_b32 v{16+i}, 0")
    k("s_mov_b32 s51, 0\ns_mov_b32 s52, 0")
    def dma(stage_sreg, slot_sreg):
        k(f"""s_add_u32 s58, {stage_sreg}, s35
              s_and_b32 s58, s58, 15
              s_lshl_b32 s59, s58, 17
              s_lshl_b32 s60, s58, 12
              s_cmp_lt_u32 {stage_sreg}, 16
              s_cselect_b32 s59, s59, {OOB:#x}
              s_cselect_b32 s60, s60, {OOB:#x}
              s_add_u32 m0, {slot_sreg}, s56
              s_add_u32 s61, s59, 8192
              buffer_load_dwordx4 v5, s[12:15], s59 offen lds
              s_add_u32 m0, m0, 1024
              s_nop 0
              buffer_load_dwordx4 v5, s[12:15], s61 offen lds
              s_add_u32 m0, {slot_sreg}, s57
              s_nop 0
              buffer_load_dwordx4 v6, s[20:23], s60 offen lds""")
    for s in range(K3_SLOTS - 1):
        k(f"s_mov_b32 s62, {s}\ns_mov_b32 s63, {s*K3_STAGE}")
        dma("s62", "s63")
    k(f"s_mov_b32 s63, {(K3_SLOTS-1)*K3_STAGE}")
    k("s_waitcnt lgkmcnt(0)")
    k("K3_LOOP:")
    k(f"s_waitcnt vmcnt({3*(K3_SLOTS-2)})\ns_barrier")
    k(f"s_add_u32 s62, s52, {K3_SLOTS-1}")
    dma("s62", "s63")
    k("v_add_u32 v12, s51, v10\nv_add_u32 v13, s51, v11")
    for ks in range(4):
        k(f"ds_read_b128 {vr(32+4*ks,4)}, v13 offset:{ks*1024}")
        k(f"ds_read_b64_tr_b16 {vr(48+4*ks,2)}, v12 offset:{ks*4096}")
        k(f"ds_read_b64_tr_b16 {vr(50+4*ks,2)}, v12 offset:{ks*4096+2048}")
    for ks in range(4):
        k(f"s_waitcnt lgkmcnt({9-3*ks})")
        k(m32(16, 48+4*ks, 32+4*ks))
    loop_tail(k, "K3_LOOP", K3_STAGE, K3_SLOTS)
    for g in range(4):
        for d in range(2):
            k(f"v_lshlrev_b32 v{32+4*g+2*d}, 16, v{64+2*g+d}")
            k(f"v_and_b32 v{33+4*g+2*d}, 0xffff0000, v{64+2*g+d}")
    k("v_sub_u32 v8, 0xffff, v15\nv_mov_b32 v9, -1\nv_mov_b32 v14, 0")
    for i in range(8):
        k(f"""s_and_b32 s50, s{72+i}, 0xffff
              v_cmp_eq_u32 vcc, s50, v8
              v_cndmask_b32 v9, v9, {i}, vcc
              v_mov_b32 v13, s{72+i}
              v_cndmask_b32 v14, v14, v13, vcc""")
    k("v_cmp_ne_u32 vcc, -1, v9\ns_cbranch_vccz K3_NOSEL")
    k(f"""v_lshlrev_b32 v12, 12, v9
          v_lshl_add_u32 v12, v2, 4, v12
          v_mov_b32 v13, {OOB:#x}
          v_cndmask_b32 v12, v13, v12, vcc
          s_lshl_b32 s50, s67, 1
          s_add_u32 s50, s50, {WS_YP}
          s_mov_b32 s52, 0""")
    for i in range(16): k(f"v_mov_b32 v{80+i}, 0")
    k("K3_YL:")
    for u in range(2):
        for g in range(4):
            k(f"buffer_load_dwordx4 {vr(48+16*u+4*g if u == 0 else 96+4*g,4)}, v12, s[20:23], s50 offen offset:{g*32}")
        k("s_add_u32 s50, s50, 32768")
    k("s_waitcnt vmcnt(4)")
    for i in range(16): k(f"v_add_f32 v{80+i}, v{80+i}, v{48+i}")
    k("s_waitcnt vmcnt(0)")
    for i in range(16): k(f"v_add_f32 v{80+i}, v{80+i}, v{96+i}")
    k("s_add_u32 s52, s52, 2\ns_cmp_lt_u32 s52, 28\ns_cbranch_scc1 K3_YL")
    k(f"""v_lshrrev_b32 v14, 16, v14
          v_and_b32 v13, 0x7fff, v14
          v_xor_b32 v12, 0xffff, v14
          v_cmp_lt_u32 vcc, 0x7fff, v14
          v_cndmask_b32 v14, v12, v13, vcc
          v_lshlrev_b32 v14, 16, v14
          v_mul_f32 v14, {f2u(-LOG2E):#x}, v14
          v_exp_f32 v14, v14
          v_add_f32 v14, 1.0, v14
          v_rcp_f32 v14, v14
          v_cmp_ne_u32 vcc, -1, v9
          v_cndmask_b32 v14, 0, v14, vcc""")
    for i in range(16): k(f"v_fma_f32 v{32+i}, v{80+i}, v14, v{32+i}")
    k("K3_NOSEL:")
    k("v_sub_f32 v73, 1.0, v72")
    for i in range(16):
        k(f"v_mul_f32 v{32+i}, v73, v{32+i}")
        k(f"v_fma_f32 v{32+i}, v72, v{16+i}, v{32+i}")
    for i in range(8): k(f"v_cvt_pk_bf16_f32 v{48+i}, v{32+2*i}, v{33+2*i}")
    for g in range(4): k(f"buffer_store_dwordx2 {vr(48+2*g,2)}, v7, s[16:19], s67 offen offset:{g*16}")
    k("K3_END:\ns_endpgm")
    return k.l

def main(out):
    ref = open(f"cdna_kernels/{NAME}.s.ref").read().split("\n")
    head = [l for l in ref if l.startswith(";") and "@launch" not in l and "Override launch" not in l and "grid=ceil" not in l]
    lines = head + [
        f"; @launch kernel=k1_kernel grid=(256,1,1) block=(576,1,1) lds={K1_LDS}",
        f"; @launch kernel=k2_kernel grid=(256,1,1) block=(512,1,1) lds={K2_LDS}",
        f"; @launch kernel=k3_kernel grid=(256,1,1) block=(512,1,1) lds={K3_LDS}",
        '.amdgcn_target "amdgcn-amd-amdhsa--gfx950"', ".text"]
    for g in (gen_k1, gen_k2, gen_k3):
        body, n = pad_hazards(g(), verbose=("-v" in sys.argv))
        print(g.__name__, len(body), "lines,", n, "pads")
        lines += body
    lines += ['.section .rodata,"a"', ".p2align 6", desc("k1_kernel", 64), ".p2align 6", desc("k2_kernel", K2_VGPR), ".p2align 6", desc("k3_kernel", 112)]
    open(out, "w").write("\n".join(lines) + "\n")

if __name__ == "__main__":
    main(sys.argv[1] if len(sys.argv) > 1 and not sys.argv[1].startswith("-") else f"cdna_kernels/{NAME}.s")
```

```python
import sys, math, struct
sys.path.insert(0, "gen")
from asmlib import pad_hazards

NAME = "gated_mix__grouped_kv_mqa__moe_arch_mod__prompt"
INSTR = "-i" in sys.argv

WS_OF = 0x400000
WS_KV = 0x800000
WS_G = 0x840000
WS_KEYS = 0x842000
WS_GMAX = 0x844000
WS_IDX = 0x845000
WS_EPOCH = 0x845800
WS_FA = 0x846000
WS_FH = 0x847000
WS_H = 0x848000
WS_FY = 0x856000
WS_FD = 0x857000
WS_YP = 0x860000
WS_DBG = 0xA00000
WS_SIZE = 0x1000000
OOB = 0x40000000
SPIN = 20000

def f2u(x): return struct.unpack("<I", struct.pack("<f", x))[0]
LOG2E = 1.4426950408889634
QSCALE = LOG2E / math.sqrt(32.0)

class K:
    def __init__(self): self.l = []
    def __call__(self, s):
        for x in s.strip("\n").split("\n"):
            x = x.strip()
            if not x: continue
            self.l.append(x if x.endswith(":") or x.startswith(".") else "    " + x)

def vr(b, n): return f"v[{b}:{b+n-1}]"
def m32(d, a, b, c=None):
    cc = vr(d, 16) if c is None else (c if isinstance(c, str) else vr(c, 16))
    return f"v_mfma_f32_32x32x16_bf16 {vr(d,16)}, {vr(a,4)}, {vr(b,4)}, {cc}"
def m16(d, a, b, c=None):
    cc = vr(d, 4) if c is None else (c if isinstance(c, str) else vr(c, 4))
    return f"v_mfma_f32_16x16x32_bf16 {vr(d,4)}, {vr(a,4)}, {vr(b,4)}, {cc}"

NST = 14
def stamp(k, n):
    if INSTR: k(f"s_memtime s[82:83]\ns_waitcnt lgkmcnt(0)\ns_mov_b32 s{84+n}, s82")
def stamp_rt(k, n):
    if INSTR: k(f"s_memrealtime s[82:83]\ns_waitcnt lgkmcnt(0)\ns_mov_b32 s{84+n}, s82")
def dump(k):
    if INSTR:
        stamp(k, NST); stamp_rt(k, NST + 1)
        k(f"s_lshl_b32 s82, s2, 4\ns_add_u32 s82, s82, s3\ns_lshl_b32 s82, s82, 6\ns_add_u32 s82, s82, {WS_DBG}")
        k("v_mov_b32 v4, 0")
        for i in range(16): k(f"v_writelane_b32 v4, s{84+i}, {i}")
        k(f"v_lshlrev_b32 v3, 2, v0\nv_mov_b32 v5, {OOB:#x}\nv_cmp_gt_u32 vcc, 16, v0\nv_cndmask_b32 v3, v5, v3, vcc")
        k(f"buffer_store_dword v4, v3, s[20:23], s82 offen")

X, WQ, E, WS, WO, OUT, WG, WU, WD, WR, GW = "s[8:11]", "s[12:15]", "s[16:19]", "s[20:23]", "s[24:27]", "s[28:31]", "s[32:35]", "s[36:39]", "s[40:43]", "s[44:47]", "s[48:51]"
TAG = "s52"
XR, ELO, EHI = 0, 65536, 98304
P2_STAGE = 20480
P2_SLOT = [131072, 65536, 86016, 106496]
KVA, KVB = 131072, 98304
GATE, UP, ACC, KEYS, YS = 0, 32768, 65536, 73728, 94208
OP_SLOTS = 5
OPW, OPO = 0, 98304
LDS_SIZE = 163840
Q0, Q1 = 8, 12
CM = 16
SA, SB = 32, 48
P = 64
O = 72
L = 88
ONES = 92
KF = 96
VF = 104
NVGPR = 128

def attn_iter(k, i, S, Sn, waits=True):
    u = ((i + 2) & 7) * 4096
    Ex = lambda j: f"v_exp_f32 v{S+j}, v{S+j}"
    C = lambda j: f"v_cvt_pk_bf16_f32 v{P+j}, v{S+2*j}, v{S+2*j+1}"
    W = lambda n: k(f"s_waitcnt lgkmcnt({n})") if waits else None
    W(3)
    k(m32(Sn, KF, Q0, CM))
    k(f"ds_read_b128 {vr(KF,4)}, v1 offset:{u}")
    k(Ex(0)); k(Ex(1)); k(Ex(2)); k(C(0))
    W(3)
    k(m32(O, VF+4, P+4))
    k(f"ds_read_b128 {vr(VF+4,4)}, v1 offset:{u+3072}")
    k(Ex(3)); k(Ex(4)); k(C(1)); k(Ex(5))
    W(3)
    k(m32(Sn, KF+4, Q1))
    k(f"ds_read_b128 {vr(KF+4,4)}, v1 offset:{u+1024}")
    k(Ex(6)); k(C(2)); k(Ex(7))
    k(m16(L, ONES, P+4))
    k(C(3)); k(Ex(8)); k(Ex(9))
    W(3)
    k(m32(O, VF, P))
    k(f"ds_read_b128 {vr(VF,4)}, v1 offset:{u+2048}")
    k(Ex(10)); k(C(4)); k(Ex(11)); k(Ex(12))
    k(m16(L, ONES, P))
    k(C(5)); k(Ex(13)); k(Ex(14)); k(Ex(15)); k(C(6)); k(C(7))

def wave_max_u32(k, v, full=True):
    k(f"""v_max_u32_dpp v{v}, v{v}, v{v} row_shr:1 row_mask:0xf bank_mask:0xf
          v_max_u32_dpp v{v}, v{v}, v{v} row_shr:2 row_mask:0xf bank_mask:0xf
          v_max_u32_dpp v{v}, v{v}, v{v} row_shr:4 row_mask:0xf bank_mask:0xf
          v_max_u32_dpp v{v}, v{v}, v{v} row_shr:8 row_mask:0xf bank_mask:0xf
          v_max_u32_dpp v{v}, v{v}, v{v} row_bcast:15 row_mask:0xa bank_mask:0xf""")
    if full: k(f"v_max_u32_dpp v{v}, v{v}, v{v} row_bcast:31 row_mask:0xc bank_mask:0xf")

def lane_mask_off(k, dst, src, n, tmp):
    k(f"v_mov_b32 v{tmp}, {OOB:#x}\nv_cmp_gt_u32 vcc, {n}, v0\nv_cndmask_b32 v{dst}, v{tmp}, v{src}, vcc")

def sigmoid(k, d, s):
    k(f"v_mul_f32 v{d}, {f2u(-LOG2E):#x}, v{s}\nv_exp_f32 v{d}, v{d}\nv_add_f32 v{d}, 1.0, v{d}\nv_rcp_f32 v{d}, v{d}")

def poll(k, label, load, bad):
    k(f"s_mov_b32 s79, {SPIN}")
    k(f"{label}_L:")
    load()
    k("s_waitcnt vmcnt(0)")
    bad()
    k(f"""s_cbranch_vccz {label}_G
          s_sub_u32 s79, s79, 1
          s_cmp_eq_u32 s79, 0
          s_cbranch_scc1 {label}_G
          s_sleep 4
          s_branch {label}_L""")
    k(f"{label}_G:")

def gen():
    k = K()
    kn = NAME + "_kernel"
    k(f".globl {kn}\n.p2align 8\n.type {kn},@function\n{kn}:")
    if INSTR:
        for i in range(16): k(f"s_mov_b32 s{84+i}, 0")
    stamp(k, 0); stamp_rt(k, 1)
    k("s_cmp_ge_u32 s2, 256\ns_cbranch_scc1 L_END")
    k("""s_load_dwordx2 s[8:9], s[0:1], 0
         s_load_dwordx2 s[12:13], s[0:1], 8
         s_load_dwordx4 s[56:59], s[0:1], 16
         s_load_dwordx2 s[20:21], s[0:1], 104
         s_load_dwordx2 s[24:25], s[0:1], 32
         s_load_dwordx2 s[28:29], s[0:1], 88
         s_load_dwordx2 s[32:33], s[0:1], 56
         s_load_dwordx2 s[36:37], s[0:1], 64
         s_load_dwordx2 s[40:41], s[0:1], 72
         s_load_dwordx2 s[44:45], s[0:1], 48
         s_load_dwordx2 s[48:49], s[0:1], 80
         v_lshrrev_b32 v1, 6, v0
         v_and_b32 v0, 63, v0
         v_readfirstlane_b32 s3, v1""")
    k("""s_and_b32 s6, s2, 1
         s_bfe_u32 s7, s2, 0x20003
         s_lshl_b32 s5, s6, 2
         s_add_u32 s5, s5, s7
         s_bfe_u32 s4, s2, 0x20001
         s_lshl_b32 s4, s4, 3
         s_lshr_b32 s53, s2, 5
         s_add_u32 s4, s4, s53""")
    for d, size in ((8, 0x400000), (12, 0x200000), (16, 0x10000), (20, WS_SIZE), (24, 0x200000), (28, 0x400000),
                    (32, 0x700000), (36, 0x700000), (40, 0x700000), (44, 2048), (48, 2048)):
        k(f"s_mov_b32 s{d+2}, {size:#x}\ns_mov_b32 s{d+3}, 0x20000")
    k("v_lshlrev_b32 v2, 4, v0")
    k("s_and_b32 s54, s2, 7\ns_lshl_b32 s54, s54, 1")
    k("s_waitcnt lgkmcnt(0)")
    k("s_cmp_eq_u32 s7, 0\ns_cselect_b32 s16, s56, s58\ns_cselect_b32 s17, s57, s59")
    k(f"s_add_u32 s56, s20, {WS_EPOCH}\ns_addc_u32 s57, s21, 0\ns_load_dword s52, s[56:57], 0")
    k("s_cmp_ge_u32 s3, 8\ns_cbranch_scc1 H_START")
    compute(k)
    helper(k)
    k("L_END:\ns_endpgm")
    return k.l

def mk_tag(k):
    k(f"s_waitcnt lgkmcnt(0)\ns_mul_i32 s52, s52, 0x9e3779b1\ns_add_u32 s52, s52, 0x7f4a7c15")

def compute(k):
    k("s_lshr_b32 s55, s3, 2\ns_and_b32 s56, s3, 3")
    k("""v_lshrrev_b32 v3, 4, v0
         v_and_b32 v4, 15, v0
         v_xor_b32 v4, v4, v3
         v_lshlrev_b32 v4, 4, v4
         v_lshl_add_u32 v5, v3, 11, v4
         s_lshl_b32 s57, s4, 1
         s_add_u32 s57, s57, s6
         s_lshl_b32 s57, s57, 16
         s_lshl_b32 s58, s3, 8
         s_add_u32 s57, s57, s58
         s_lshl_b32 s58, s3, 13
         s_lshl_b32 s59, s7, 1""")
    for i in range(8):
        k(f"""s_add_u32 s60, s59, {i}
              s_and_b32 s60, s60, 7
              s_lshl_b32 s61, s60, 10
              s_add_u32 m0, s58, s61
              s_lshl_b32 s61, s60, 13
              s_add_u32 s61, s61, s57
              s_and_b32 s60, s60, 3
              s_lshl_b32 s60, s60, 6
              v_xor_b32 v6, s60, v5
              buffer_load_dwordx4 v6, {X}, s61 offen lds""")
    k("s_lshl_b32 s62, s3, 12")
    k("s_cmp_eq_u32 s7, 3\ns_cbranch_scc1 C_F1LD\ns_cmp_eq_u32 s7, 2\ns_cbranch_scc1 C_F1RG")
    k("s_lshl_b32 s57, s3, 13")
    for i in range(8):
        k(f"""s_add_u32 s60, s4, {i}
              s_and_b32 s60, s60, 7
              s_lshl_b32 s61, s60, 10
              s_add_u32 s61, s61, s57
              s_and_b32 s63, s60, 3
              s_lshl_b32 s63, s63, 10
              s_lshr_b32 s60, s60, 2
              s_lshl_b32 s60, s60, 15
              s_add_u32 s63, s63, s60
              s_add_u32 s63, s63, s62
              s_add_u32 m0, s63, {ELO}
              buffer_load_dwordx4 v2, {E}, s61 offen lds""")
    k("s_branch C_F1LD")
    k("C_F1RG:")
    lane_mask_off(k, 6, 2, 16, 7)
    k(f"""s_lshl_b32 s57, s3, 8
          s_add_u32 m0, s62, {ELO}
          buffer_load_dwordx4 v6, {WR}, s57 offen lds
          s_add_u32 m0, s62, {ELO+1024}
          buffer_load_dwordx4 v6, {GW}, s57 offen lds""")
    k("C_F1LD:")
    k("""v_lshrrev_b32 v3, 5, v0
         v_bfe_u32 v4, v0, 2, 2
         v_bfe_u32 v5, v0, 4, 1
         v_lshlrev_b32 v5, 5, v5
         v_and_b32 v6, 3, v0
         v_lshl_add_u32 v5, v6, 3, v5""")
    k("""v_and_b32 v8, 31, v0
         v_and_b32 v9, 15, v0
         v_xor_b32 v9, v9, v3
         v_lshlrev_b32 v9, 4, v9
         v_lshl_add_u32 v6, v8, 8, v9
         v_bfe_u32 v9, v0, 1, 3
         v_xor_b32 v9, v9, v3
         v_lshlrev_b32 v9, 4, v9
         v_lshl_add_u32 v7, v8, 7, v9""")
    mk_tag(k)
    k("s_cmp_eq_u32 s7, 3\ns_cbranch_scc1 C_F1A")
    k("v_add_u32 v8, s58, v6")
    k("s_cmp_eq_u32 s7, 2\ns_cbranch_scc1 C_F1RG2")
    k(f"""v_lshl_add_u32 v9, v3, 3, v4
          v_lshl_add_u32 v9, v9, 6, v5
          s_add_u32 s60, s62, {ELO}
          v_add_u32 v9, s60, v9
          s_waitcnt vmcnt(0)""")
    for ks in range(8):
        k(f"v_xor_b32 v10, {ks*32}, v8\nds_read_b128 {vr(32+4*ks,4)}, v10")
        off = (ks & 3) * 1024 + (ks >> 2) * 32768
        k(f"ds_read_b64_tr_b16 {vr(64+4*ks,2)}, v9 offset:{off}\nds_read_b64_tr_b16 {vr(66+4*ks,2)}, v9 offset:{off+256}")
    k("s_branch C_F1MM")
    k("C_F1RG2:")
    k(f"""v_and_b32 v9, 31, v0
          v_mov_b32 v10, 256
          v_cmp_eq_u32 vcc, 0, v9
          v_cndmask_b32 v10, v10, 0, vcc
          v_mov_b32 v11, 1024
          v_cmp_eq_u32 vcc, 1, v9
          v_cndmask_b32 v10, v10, v11, vcc
          v_lshl_add_u32 v9, v3, 4, v10
          s_add_u32 s60, s62, {ELO}
          v_add_u32 v9, s60, v9
          s_waitcnt vmcnt(0)""")
    for ks in range(8):
        k(f"v_xor_b32 v10, {ks*32}, v8\nds_read_b128 {vr(32+4*ks,4)}, v10")
        k(f"ds_read_b128 {vr(64+4*ks,4)}, v9 offset:{ks*32}")
    k("C_F1MM:")
    k("s_waitcnt lgkmcnt(0)")
    k("s_cmp_eq_u32 s7, 1\ns_cbranch_scc1 C_F1V")
    for ks in range(8): k(m32(16, 64+4*ks, 32+4*ks, "0" if ks == 0 else None))
    k("s_branch C_F1W")
    k("C_F1V:")
    for ks in range(8): k(m32(16, 32+4*ks, 64+4*ks, "0" if ks == 0 else None))
    k("C_F1W:")
    k(f"s_add_u32 s60, s62, {EHI}\nv_add_u32 v9, s60, v2")
    for q in range(4): k(f"ds_write_b128 v9, {vr(16+4*q,4)} offset:{q*1024}")
    k("C_F1A:")
    k("s_waitcnt vmcnt(0) lgkmcnt(0)")
    stamp(k, 2)
    k("s_barrier")
    k("s_cmp_ge_u32 s3, 2\ns_cbranch_scc1 C_F1B")
    k(f"s_lshl_b32 s60, s2, 3\ns_lshl_b32 s61, s3, 2\ns_add_u32 s60, s60, s61\ns_add_u32 s63, s60, {WS_FA}")
    k("s_cmp_eq_u32 s7, 3\ns_cbranch_scc1 C_F1B")
    k(f"s_lshl_b32 s60, s3, 11\ns_add_u32 s60, s60, {EHI}\nv_add_u32 v9, s60, v2")
    for w in range(8):
        k(f"ds_read_b128 {vr(32+8*w,4)}, v9 offset:{w*4096}\nds_read_b128 {vr(36+8*w,4)}, v9 offset:{w*4096+1024}")
    for w in range(1, 8):
        k(f"s_waitcnt lgkmcnt({14-2*w})")
        for j in range(8): k(f"v_add_f32 v{32+j}, v{32+j}, v{32+8*w+j}")
    k("C_F1B:")
    k("s_barrier")
    k("""v_lshl_add_u32 v8, v3, 3, v4
         v_xor_b32 v9, s56, v4
         v_lshl_add_u32 v9, v9, 6, v5
         v_lshl_add_u32 v10, v8, 8, v9
         s_cmp_eq_u32 s55, s6
         s_cselect_b32 s64, 1, 0
         s_cbranch_scc1 C_P2X
         v_mov_b32 v6, v7""")
    k("C_P2X:")
    XB = [96, 64]; WB = [112, 80]
    xa = [12, 13, 14, 15]
    def p2_addr(stage_expr_sreg, slot):
        k(f"""s_add_u32 s65, {stage_expr_sreg}, s54
              s_and_b32 s65, s65, 15
              s_and_b32 s66, s65, 1
              s_lshl_b32 s66, s66, 7
              s_lshr_b32 s65, s65, 1
              s_lshl_b32 s65, s65, 13
              s_cmp_eq_u32 s64, 1
              s_cselect_b32 s66, s66, 0
              s_cselect_b32 s65, s65, {slot+16384}
              v_xor_b32 v12, s66, v6
              v_add_u32 v12, s65, v12
              v_add_u32 v11, {slot}, v10
              v_xor_b32 v13, 32, v12
              v_xor_b32 v14, 64, v12
              v_xor_b32 v15, 96, v12""")
    def p2_reads(b):
        r = []
        for ks in range(4):
            r.append(f"ds_read_b128 {vr(XB[b]+4*ks,4)}, v{xa[ks]}")
            r.append(f"ds_read_b64_tr_b16 {vr(WB[b]+4*ks,2)}, v11 offset:{ks*4096}")
            r.append(f"ds_read_b64_tr_b16 {vr(WB[b]+2+4*ks,2)}, v11 offset:{ks*4096+1024}")
        return r
    k("s_mov_b32 s67, 0")
    p2_addr("s67", P2_SLOT[0])
    for r in p2_reads(0): k(r)
    k("s_cmp_ge_u32 s3, 2\ns_cbranch_scc1 C_PUBD")
    k("s_cmp_eq_u32 s7, 3\ns_cbranch_scc1 C_PUBF")
    k("s_lshl_b32 s60, s4, 1\ns_add_u32 s60, s60, s6")
    k("s_cmp_eq_u32 s7, 2\ns_cbranch_scc1 C_PUBR")
    for i in range(4): k(f"v_cvt_pk_bf16_f32 v{40+i}, v{32+2*i}, v{33+2*i}")
    k(f"""s_add_u32 s61, s60, 1
          s_add_u32 s61, s61, s3
          s_and_b32 s61, s61, 63
          s_lshl_b32 s61, s61, 12
          s_add_u32 s61, s61, 2048
          s_lshl_b32 s60, s60, 12
          s_cmp_eq_u32 s7, 0
          s_cselect_b32 s60, s60, s61
          s_lshl_b32 s61, s3, 10
          s_add_u32 s60, s60, s61
          s_add_u32 s60, s60, {WS_KV}
          buffer_store_dwordx4 v[40:43], v2, {WS}, s60 offen sc1
          s_branch C_PUBF""")
    k("C_PUBR:")
    k("s_cmp_eq_u32 s3, 1\ns_cbranch_scc1 C_PUBF")
    k(f"""s_lshl_b32 s61, s60, 5
          v_add_u32 v40, s61, v0
          v_cvt_pk_bf16_f32 v41, v32, v32
          v_and_b32 v41, 0xffff, v41
          v_xor_b32 v42, 0xffff, v41
          v_or_b32 v43, 0x8000, v41
          v_cmp_lt_u32 vcc, 0x7fff, v41
          v_cndmask_b32 v41, v43, v42, vcc
          v_sub_u32 v42, 0xffff, v40
          v_lshl_or_b32 v41, v41, 16, v42""")
    sigmoid(k, 44, 33)
    k("v_lshlrev_b32 v40, 2, v40")
    lane_mask_off(k, 40, 40, 32, 45)
    k(f"""s_mov_b32 s61, {WS_KEYS}
          buffer_store_dword v41, v40, {WS}, s61 offen sc1
          s_mov_b32 s61, {WS_G}
          buffer_store_dword v44, v40, {WS}, s61 offen sc1
          v_mov_b32 v46, v41""")
    wave_max_u32(k, 46, full=False)
    k(f"""v_cmp_eq_u32 vcc, 31, v0
          v_cndmask_b32 v47, v45, 0, vcc
          s_lshl_b32 s60, s60, 2
          s_add_u32 s60, s60, {WS_GMAX}
          buffer_store_dword v46, v47, {WS}, s60 offen sc1""")
    k("C_PUBF:")
    k("v_mov_b32 v40, 0")
    lane_mask_off(k, 40, 40, 1, 41)
    k(f"""v_mov_b32 v41, {TAG}
          s_waitcnt vmcnt(0)
          buffer_store_dword v41, v40, {WS}, s63 offen sc1""")
    k("C_PUBD:")
    stamp(k, 3)
    for i in range(16): k(f"v_mov_b32 v{16+i}, 0")
    k("C_P2L:")
    for q in range(4):
        b = q & 1
        k("s_waitcnt lgkmcnt(0)\ns_barrier")
        k(f"s_add_u32 s68, s67, {q+1}")
        p2_addr("s68", P2_SLOT[(q + 1) & 3])
        rd = p2_reads(1 - b)
        for ks in range(4):
            k(m32(16, WB[b]+4*ks, XB[b]+4*ks))
            for r in rd[3*ks:3*ks+3]: k(r)
    k("s_add_u32 s67, s67, 4\ns_cmp_lt_u32 s67, 16\ns_cbranch_scc1 C_P2L")
    stamp(k, 4)
    k(f"s_mov_b32 s60, {f2u(QSCALE):#x}")
    for i in range(16): k(f"v_mul_f32 v{16+i}, s60, v{16+i}")
    k("s_waitcnt lgkmcnt(0)")
    for i in range(8): k(f"v_cvt_pk_bf16_f32 v{Q0+i}, v{16+2*i}, v{17+2*i}")
    k(f"""v_lshrrev_b32 v6, 2, v0
          v_lshrrev_b32 v7, 4, v0
          v_xor_b32 v6, v6, v7
          v_and_b32 v6, 1, v6
          v_cmp_eq_u32 vcc, 0, v6
          v_mov_b32 v7, 0x3f803f80
          v_cndmask_b32 v{ONES}, 0, v7, vcc
          v_mov_b32 v{ONES+1}, v{ONES}
          v_mov_b32 v{ONES+2}, v{ONES}
          v_mov_b32 v{ONES+3}, v{ONES}
          v_add_u32 v1, {KVA}, v2""")
    for i in range(16): k(f"v_mov_b32 v{O+i}, 0")
    for i in range(4): k(f"v_mov_b32 v{L+i}, 0\nv_mov_b32 v{P+4+i}, 0")
    k("s_barrier")
    stamp(k, 5)
    k(f"""ds_read_b128 {vr(VF,4)}, v1
          ds_read_b128 {vr(VF+4,4)}, v1 offset:1024
          ds_read_b128 {vr(KF,4)}, v1 offset:4096
          s_waitcnt lgkmcnt(1)""")
    k(m32(SA, VF, Q0, "0")); k(m32(SA, VF+4, Q1))
    k(f"""ds_read_b128 {vr(VF+4,4)}, v1 offset:{4096+3072}
          ds_read_b128 {vr(KF+4,4)}, v1 offset:{4096+1024}
          ds_read_b128 {vr(VF,4)}, v1 offset:{4096+2048}""")
    k(f"v_max3_f32 v6, v{SA}, v{SA+1}, v{SA+2}")
    for j in range(3, 15, 2): k(f"v_max3_f32 v6, v6, v{SA+j}, v{SA+j+1}")
    k(f"v_max_f32 v6, v6, v{SA+15}")
    k("v_mov_b32 v7, v6\nv_permlane32_swap_b32 v6, v7\nv_max_f32 v6, v6, v7")
    k(f"v_sub_f32 v{CM}, 0, v6")
    for j in range(1, 16): k(f"v_mov_b32 v{CM+j}, v{CM}")
    for j in range(16): k(f"v_sub_f32 v{SA+j}, v{SA+j}, v6")
    k("s_mov_b32 s67, 0")
    k(".p2align 6")
    k("C_AL:")
    bufs = [SA, SB]
    for i in range(6): attn_iter(k, i, bufs[i & 1], bufs[(i + 1) & 1])
    k(f"s_waitcnt lgkmcnt(0)\ns_barrier\nv_xor_b32 v1, {KVA ^ KVB:#x}, v1")
    attn_iter(k, 6, bufs[0], bufs[1], waits=False)
    attn_iter(k, 7, bufs[1], bufs[0])
    k("s_add_u32 s67, s67, 1\ns_cmp_lt_u32 s67, 8\ns_cbranch_scc1 C_AL")
    stamp(k, 6)
    k("s_waitcnt lgkmcnt(0)")
    k(m32(O, VF+4, P+4)); k(m16(L, ONES, P+4))
    k(f"v_add_f32 v6, abs(v{O}), abs(v{O+1})")
    for j in range(2, 16): k(f"v_add_f32 v6, v6, abs(v{O+j})")
    k(f"v_mov_b32 v7, 0x5d800000\nv_cmp_nlt_f32 vcc, v{L}, v7\ns_mov_b64 s[60:61], vcc")
    k("v_mov_b32 v7, 0x7f000000\nv_cmp_nlt_f32 vcc, v6, v7\ns_or_b64 s[60:61], s[60:61], vcc")
    k("s_cmp_lg_u64 s[60:61], 0\ns_cbranch_scc1 C_SLOW")
    k("C_FIN:")
    k(f"v_rcp_f32 v6, v{L}")
    for j in range(16): k(f"v_mul_f32 v{O+j}, v{O+j}, v6")
    for j in range(8): k(f"v_cvt_pk_bf16_f32 v{P+j}, v{O+2*j}, v{O+2*j+1}")
    k(f"""s_lshl_b32 s60, s4, 1
          s_add_u32 s60, s60, s55
          s_lshl_b32 s69, s60, 5
          s_lshl_b32 s61, s5, 2
          s_add_u32 s60, s69, s61
          s_add_u32 s60, s60, s56
          s_lshl_b32 s60, s60, 11
          s_add_u32 s60, s60, {WS_OF}
          buffer_store_dwordx4 {vr(P,4)}, v2, {WS}, s60 offen sc1
          buffer_store_dwordx4 {vr(P+4,4)}, v2, {WS}, s60 offen offset:1024 sc1
          s_lshl_b32 s60, s4, 3
          s_add_u32 s60, s60, s5
          s_lshl_b32 s60, s60, 3
          s_add_u32 s60, s60, s3
          s_lshl_b32 s60, s60, 2
          s_add_u32 s60, s60, {WS_FD}
          v_mov_b32 v6, 0""")
    lane_mask_off(k, 6, 6, 1, 7)
    k(f"""v_mov_b32 v7, {TAG}
          s_waitcnt vmcnt(0)
          buffer_store_dword v7, v6, {WS}, s60 offen sc1""")
    k("s_barrier")
    stamp(k, 7)
    k(f"""v_and_b32 v8, 31, v0
          v_add_u32 v8, s69, v8
          v_lshlrev_b32 v9, 2, v8
          v_lshlrev_b32 v7, 11, v8
          v_lshl_add_u32 v7, v3, 3, v7
          s_lshl_b32 s60, s5, 8
          s_lshl_b32 s61, s56, 6
          s_add_u32 s70, s60, s61
          s_mov_b32 s60, {WS_G}
          buffer_load_dword v40, v9, {WS}, s60 offen sc1""")
    for g in range(4): k(f"buffer_load_dwordx2 {vr(32+2*g,2)}, v7, {X}, s70 offen offset:{g*16}")
    k(f"""v_lshl_add_u32 v9, v3, 2, v4
          v_xor_b32 v10, s56, v4
          v_lshl_add_u32 v10, v10, 6, v5
          v_lshl_add_u32 v10, v9, 8, v10
          s_lshl_b32 s60, s55, 12
          s_add_u32 s60, s60, {OPO}
          v_add_u32 v6, s60, v2""")
    for i in range(16): k(f"v_mov_b32 v{16+i}, 0")
    def op_addr():
        k("s_lshl_b32 s65, s66, 1\nv_add_u32 v11, s65, v10\nv_add_u32 v12, s66, v6")
        k(f"s_add_u32 s66, s66, 8192\ns_cmp_eq_u32 s66, {8192*OP_SLOTS}\ns_cselect_b32 s66, 0, s66")
    def op_reads(b):
        r = []
        for ks in range(4):
            r.append(f"ds_read_b128 {vr(XB[b]+4*ks,4)}, v12 offset:{ks*1024}")
            r.append(f"ds_read_b64_tr_b16 {vr(WB[b]+4*ks,2)}, v11 offset:{ks*4096}")
            r.append(f"ds_read_b64_tr_b16 {vr(WB[b]+2+4*ks,2)}, v11 offset:{ks*4096+2048}")
        return r
    k("s_mov_b32 s66, 0\ns_mov_b32 s67, 0")
    k("s_barrier")
    stamp(k, 8)
    op_addr()
    for r in op_reads(0): k(r)
    k("C_OL:")
    for b in range(2):
        k("s_waitcnt lgkmcnt(0)\ns_barrier")
        op_addr()
        rd = op_reads(1 - b)
        for ks in range(4):
            k(m32(16, WB[b]+4*ks, XB[b]+4*ks))
            for r in rd[3*ks:3*ks+3]: k(r)
    k("s_add_u32 s67, s67, 2\ns_cmp_lt_u32 s67, 16\ns_cbranch_scc1 C_OL")
    stamp(k, 9)
    k("s_waitcnt vmcnt(0) lgkmcnt(0)")
    k(f"v_mov_b32 v9, {YS-64}\nds_read_b128 v[64:67], v9\nds_read_b128 v[68:71], v9 offset:16")
    for g in range(4):
        for d in range(2):
            k(f"v_lshlrev_b32 v{44+4*g+2*d}, 16, v{32+2*g+d}")
            k(f"v_and_b32 v{45+4*g+2*d}, 0xffff0000, v{32+2*g+d}")
    k("v_mov_b32 v9, -1\ns_waitcnt lgkmcnt(0)")
    for i in range(8):
        k(f"v_cmp_eq_u32 vcc, v{64+i}, v8\nv_cndmask_b32 v9, v9, {i}, vcc")
    k("v_cmp_ne_u32 vcc, -1, v9\ns_cbranch_vccz C_NOSEL")
    k(f"""v_and_b32 v11, 7, v9
          v_lshlrev_b32 v11, 9, v11
          v_lshl_add_u32 v11, v3, 4, v11
          s_lshl_b32 s60, s56, 7
          s_add_u32 s60, s60, {YS}
          v_add_u32 v11, s60, v11""")
    for g in range(4): k(f"ds_read_b128 {vr(64+4*g,4)}, v11 offset:{g*32}")
    k("s_waitcnt lgkmcnt(0)")
    for i in range(16): k(f"v_add_f32 v{64+i}, v{64+i}, v{44+i}\nv_cndmask_b32 v{44+i}, v{44+i}, v{64+i}, vcc")
    k("C_NOSEL:")
    k("v_sub_f32 v41, 1.0, v40")
    for i in range(16):
        k(f"v_mul_f32 v{44+i}, v41, v{44+i}")
        k(f"v_fma_f32 v{44+i}, v40, v{16+i}, v{44+i}")
    for i in range(8): k(f"v_cvt_pk_bf16_f32 v{64+i}, v{44+2*i}, v{45+2*i}")
    for g in range(4): k(f"buffer_store_dwordx2 {vr(64+2*g,2)}, v7, {OUT}, s70 offen offset:{g*16}")
    k("s_or_b32 s60, s2, s3\ns_cmp_lg_u32 s60, 0\ns_cbranch_scc1 C_DONE")
    k("v_mov_b32 v6, 0")
    lane_mask_off(k, 6, 6, 1, 9)
    k(f"v_mov_b32 v9, {TAG}\ns_mov_b32 s60, {WS_EPOCH}\nbuffer_store_dword v9, v6, {WS}, s60 offen sc1")
    k("C_DONE:")
    dump(k)
    k("s_endpgm")
    k("C_SLOW:")
    k("v_mov_b32 v112, 0xff800000")
    for i in range(16): k(f"v_mov_b32 v{O+i}, 0")
    for i in range(4): k(f"v_mov_b32 v{L+i}, 0")
    k("s_mov_b32 s67, 0")
    k("C_SL:")
    k(f"""s_lshl_b32 s60, s67, 12
          s_add_u32 s61, s60, 4096
          s_and_b32 s61, s61, 0x3ffff
          s_add_u32 s62, s60, 8192
          s_and_b32 s62, s62, 0x3ffff
          s_add_u32 s60, s60, {WS_KV}
          s_add_u32 s61, s61, {WS_KV}
          s_add_u32 s62, s62, {WS_KV}
          buffer_load_dwordx4 {vr(KF,4)}, v2, {WS}, s60 offen sc1
          buffer_load_dwordx4 {vr(KF+4,4)}, v2, {WS}, s60 offen offset:1024 sc1
          buffer_load_dwordx4 {vr(VF,4)}, v2, {WS}, s61 offen offset:2048 sc1
          buffer_load_dwordx4 {vr(VF+4,4)}, v2, {WS}, s62 offen offset:3072 sc1
          s_waitcnt vmcnt(0)""")
    k(m32(SA, KF, Q0, "0")); k(m32(SA, KF+4, Q1))
    k(f"v_max3_f32 v6, v{SA}, v{SA+1}, v{SA+2}")
    for j in range(3, 15, 2): k(f"v_max3_f32 v6, v6, v{SA+j}, v{SA+j+1}")
    k(f"v_max_f32 v6, v6, v{SA+15}")
    k("v_mov_b32 v7, v6\nv_permlane32_swap_b32 v6, v7\nv_max3_f32 v6, v6, v7, v112")
    k("v_sub_f32 v7, v112, v6\nv_exp_f32 v7, v7\nv_mov_b32 v112, v6")
    for j in range(16): k(f"v_mul_f32 v{O+j}, v{O+j}, v7")
    for j in range(4): k(f"v_mul_f32 v{L+j}, v{L+j}, v7")
    for j in range(16): k(f"v_sub_f32 v{SA+j}, v{SA+j}, v6\nv_exp_f32 v{SA+j}, v{SA+j}")
    for j in range(8): k(f"v_cvt_pk_bf16_f32 v{P+j}, v{SA+2*j}, v{SA+2*j+1}")
    k(m32(O, VF, P)); k(m32(O, VF+4, P+4)); k(m16(L, ONES, P)); k(m16(L, ONES, P+4))
    k("s_add_u32 s67, s67, 1\ns_cmp_lt_u32 s67, 64\ns_cbranch_scc1 C_SL")
    k("s_branch C_FIN")

def helper(k):
    k("H_START:")
    k("s_setprio 2")
    k("s_sub_u32 s55, s3, 8")
    k("""v_lshrrev_b32 v3, 4, v0
         v_lshlrev_b32 v4, 2, v3
         v_and_b32 v6, 15, v0
         v_xor_b32 v6, v6, v4
         v_lshlrev_b32 v6, 4, v6
         v_lshl_add_u32 v5, v3, 11, v6
         s_lshl_b32 s60, s55, 15
         s_lshl_b32 s61, s5, 8
         s_add_u32 s60, s60, s61
         v_add_u32 v5, s60, v5""")
    k("""v_lshrrev_b32 v3, 3, v0
         s_lshl_b32 s60, s55, 3
         v_add_u32 v3, s60, v3
         v_bfe_u32 v4, v3, 1, 3
         v_and_b32 v6, 7, v0
         v_xor_b32 v6, v6, v4
         v_lshlrev_b32 v6, 4, v6
         v_lshl_add_u32 v6, v3, 11, v6
         s_lshl_b32 s60, s4, 1
         s_xor_b32 s61, s6, 1
         s_add_u32 s60, s60, s61
         s_lshl_b32 s60, s60, 16
         v_add_u32 v6, s60, v6
         s_lshl_b32 s56, s55, 12
         s_lshl_b32 s57, s55, 10
         s_add_u32 s57, s57, 16384""")
    def wdma(srd, stage_s, slot_s):
        k(f"s_lshl_b32 s60, {stage_s}, 17\ns_add_u32 m0, {slot_s}, s56")
        for i in range(4):
            k(f"buffer_load_dwordx4 v5, {srd}, s60 offen lds")
            if i < 3: k("s_add_u32 m0, m0, 1024\ns_add_u32 s60, s60, 8192")
    def p2dma(stage, slot):
        k(f"s_add_u32 s65, {stage}, s54\ns_and_b32 s65, s65, 15")
        wdma(WQ, "s65", slot)
        k(f"s_lshl_b32 s60, s65, 7\ns_add_u32 m0, {slot}, s57\nbuffer_load_dwordx4 v6, {X}, s60 offen lds")
    mk_tag(k)
    p2dma(0, P2_SLOT[0])
    k("s_barrier")
    p2dma(1, P2_SLOT[1])
    k("s_waitcnt vmcnt(5)\ns_barrier")
    p2dma(2, P2_SLOT[2]); p2dma(3, P2_SLOT[3])
    k("s_mov_b32 s67, 4")
    k("H_P2L:")
    for q in range(4):
        k("s_waitcnt vmcnt(10)\ns_barrier")
        k(f"s_add_u32 s68, s67, {q}")
        p2dma("s68", P2_SLOT[q])
    k("s_add_u32 s67, s67, 4\ns_cmp_lt_u32 s67, 16\ns_cbranch_scc1 H_P2L")
    def fa_load():
        k(f"s_mov_b32 s60, {WS_FA}\nbuffer_load_dwordx4 v[8:11], v2, {WS}, s60 offen sc1\nbuffer_load_dwordx4 v[12:15], v2, {WS}, s60 offen offset:1024 sc1")
    def fa_bad():
        for i in range(8): k(f"v_xor_b32 v{8+i}, {TAG}, v{8+i}")
        k("v_or3_b32 v8, v8, v9, v10\nv_or3_b32 v8, v8, v11, v12\nv_or3_b32 v8, v8, v13, v14\nv_or_b32 v8, v8, v15\nv_cmp_ne_u32 vcc, 0, v8")
    k("s_lshl_b32 s58, s55, 13")
    def kvdma(slot_s, lds):
        k(f"s_lshl_b32 s60, {slot_s}, 15\ns_add_u32 s60, s60, s58\ns_add_u32 s60, s60, {WS_KV}\ns_add_u32 m0, s58, {lds}")
        for i in range(4): k(f"buffer_load_dwordx4 v2, {WS}, s60 offen offset:{i*1024} sc1 lds")
        k("s_add_u32 m0, m0, 4096\ns_add_u32 s60, s60, 4096")
        for i in range(4): k(f"buffer_load_dwordx4 v2, {WS}, s60 offen offset:{i*1024} sc1 lds")
    k("s_waitcnt vmcnt(10)\ns_barrier")
    fa_load()
    k("s_waitcnt vmcnt(7)\ns_barrier")
    k("s_waitcnt vmcnt(2)\ns_barrier")
    k("s_waitcnt vmcnt(0)")
    fa_bad()
    k("s_mov_b32 s66, 0\ns_cbranch_vccnz H_A1")
    kvdma(0, KVA)
    k("s_mov_b32 s66, 1")
    k("H_A1:")
    k("s_barrier")
    k("s_cmp_eq_u32 s66, 1\ns_cbranch_scc1 H_A2")
    poll(k, "H_PA", fa_load, fa_bad)
    kvdma(0, KVA)
    k("H_A2:")
    stamp(k, 4)
    k("""s_sub_u32 s60, s2, 32
         s_and_b32 s61, s60, 7
         s_lshr_b32 s62, s60, 3
         s_lshr_b32 s63, s62, 2
         s_lshl_b32 s63, s63, 3
         s_add_u32 s63, s63, s61
         s_lshl_b32 s63, s63, 2
         s_and_b32 s62, s62, 3
         s_add_u32 s59, s63, s62
         s_cmp_ge_u32 s2, 32
         s_cselect_b32 s59, s59, 0
         s_cselect_b32 s64, 1, 0
         s_cselect_b32 s34, s34, 0
         s_cselect_b32 s38, s38, 0
         s_cselect_b32 s42, s42, 0""")
    k("""v_lshrrev_b32 v3, 1, v0
         v_mul_u32_u24 v3, 7168, v3
         v_and_b32 v4, 1, v0
         v_lshl_add_u32 v7, v4, 4, v3
         s_lshl_b32 s60, s59, 5
         s_mul_i32 s61, s55, 1835008
         s_add_u32 s60, s60, s61
         v_add_u32 v7, s60, v7""")
    def gudma(srd, base):
        k(f"s_add_u32 m0, s58, {base}\ns_mov_b32 s60, 0")
        for i in range(8):
            k(f"buffer_load_dwordx4 v7, {srd}, s60 offen lds")
            if i < 7: k(f"s_add_u32 m0, m0, 1024\ns_add_u32 s60, s60, {32*7168}")
    k("s_waitcnt vmcnt(0)\ns_barrier")
    stamp(k, 5)
    kvdma(1, KVB)
    k("s_or_b32 s60, s2, s55\ns_cmp_lg_u32 s60, 0\ns_cbranch_scc1 H_NOTOP")
    top8(k)
    k("H_NOTOP:")
    gudma(WG, GATE)
    k("s_waitcnt vmcnt(8)\ns_barrier")
    kvdma(2, KVA)
    gudma(WU, UP)
    k("s_waitcnt vmcnt(8)\ns_barrier")
    kvdma(3, KVB)
    def idx_load():
        k(f"v_and_b32 v3, 7, v0\nv_lshlrev_b32 v3, 3, v3\ns_mov_b32 s60, {WS_IDX}\nbuffer_load_dwordx2 v[8:9], v3, {WS}, s60 offen sc1")
    def idx_bad():
        k(f"v_cmp_ne_u32 vcc, {TAG}, v9")
    poll(k, "H_PI", idx_load, idx_bad)
    k("v_and_b32 v10, 0xffff, v8\nv_sub_u32 v10, 0xffff, v10\nv_and_b32 v10, 2047, v10")
    k(f"v_and_b32 v3, 7, v0\nv_lshlrev_b32 v3, 2, v3\nv_add_u32 v3, {YS-64}, v3\nds_write_b32 v3, v10")
    k("s_cmp_eq_u32 s64, 0\ns_cbranch_scc1 H_S1D")
    k(f"""v_lshrrev_b32 v4, 4, v0
          v_lshlrev_b32 v4, 4, v4
          v_lshl_add_u32 v3, v10, 11, v4
          v_and_b32 v4, 8, v0
          v_cmp_eq_u32 vcc, 0, v4
          v_mov_b32 v4, {OOB:#x}
          v_cndmask_b32 v3, v4, v3, vcc
          s_lshl_b32 s60, s55, 9""")
    FA, FB, FC = 16, 48, 80
    for ks in range(8): k(f"buffer_load_dwordx4 {vr(FA+4*ks,4)}, v3, {X}, s60 offen offset:{ks*64}")
    k(f"""v_lshrrev_b32 v3, 4, v0
          v_bfe_u32 v4, v0, 2, 2
          v_lshl_add_u32 v3, v3, 3, v4
          v_and_b32 v4, 3, v0
          v_lshlrev_b32 v4, 3, v4
          v_lshl_add_u32 v3, v3, 5, v4
          v_add_u32 v3, s58, v3""")
    for base, acc in ((GATE, FC), (UP, FC+4)):
        for ks in range(8):
            k(f"ds_read_b64_tr_b16 {vr(FB+4*ks,2)}, v3 offset:{base+ks*1024}")
            k(f"ds_read_b64_tr_b16 {vr(FB+4*ks+2,2)}, v3 offset:{base+ks*1024+128}")
        k("s_waitcnt vmcnt(0) lgkmcnt(0)")
        for ks in range(8): k(m16(acc, FB+4*ks, FA+4*ks, "0" if ks == 0 else None))
    k(f"""v_and_b32 v3, 15, v0
          v_lshlrev_b32 v3, 6, v3
          v_lshrrev_b32 v4, 4, v0
          v_lshl_add_u32 v3, v4, 4, v3
          s_lshl_b32 s60, s55, 11
          s_add_u32 s60, s60, {ACC}
          v_add_u32 v3, s60, v3
          ds_write_b128 v3, {vr(FC,4)}
          ds_write_b128 v3, {vr(FC+4,4)} offset:1024""")
    k("H_S1D:")
    k("s_waitcnt vmcnt(0) lgkmcnt(0)\ns_barrier")
    kvdma(4, KVA)
    k(f"""v_lshrrev_b32 v3, 4, v0
          v_and_b32 v4, 15, v0
          v_lshlrev_b32 v4, 4, v4
          v_lshl_add_u32 v3, v3, 11, v4
          s_lshr_b32 s60, s59, 3
          s_lshl_b32 s60, s60, 18
          s_and_b32 s61, s59, 7
          s_lshl_b32 s61, s61, 8
          s_add_u32 s60, s60, s61
          s_lshl_b32 s61, s55, 16
          s_add_u32 s60, s60, s61
          s_add_u32 m0, s58, {GATE}""")
    for i in range(8):
        k(f"buffer_load_dwordx4 v3, {WD}, s60 offen lds")
        if i < 7: k("s_add_u32 m0, m0, 1024\ns_add_u32 s60, s60, 8192")
    k("s_cmp_eq_u32 s64, 0\ns_cbranch_scc1 H_S2N\ns_cmp_lg_u32 s55, 0\ns_cbranch_scc1 H_S2N")
    k(f"v_lshlrev_b32 v3, 3, v0\nv_add_u32 v3, {ACC}, v3")
    for w in range(4):
        k(f"ds_read_b64 {vr(FA+2*w,2)}, v3 offset:{w*2048}\nds_read_b64 {vr(FB+2*w,2)}, v3 offset:{w*2048+1024}")
    k("s_waitcnt lgkmcnt(0)")
    for j in range(2):
        for base, dst in ((FA, FC), (FB, FC+2)):
            k(f"v_add_f32 v{dst+j}, v{base+j}, v{base+2+j}")
            for w in range(2, 4): k(f"v_add_f32 v{dst+j}, v{dst+j}, v{base+2*w+j}")
        sigmoid(k, FC+4+j, FC+j)
        k(f"v_mul_f32 v{FC+4+j}, v{FC+4+j}, v{FC+j}\nv_mul_f32 v{FC+4+j}, v{FC+4+j}, v{FC+2+j}")
    k(f"""v_cvt_pk_bf16_f32 v{FC+6}, v{FC+4}, v{FC+5}
          v_lshrrev_b32 v3, 3, v0
          v_mul_u32_u24 v3, 7168, v3
          v_and_b32 v4, 7, v0
          v_lshl_add_u32 v3, v4, 2, v3
          s_lshl_b32 s60, s59, 5
          s_add_u32 s60, s60, {WS_H}
          buffer_store_dword v{FC+6}, v3, {WS}, s60 offen sc1
          s_lshr_b32 s60, s59, 3
          s_lshl_b32 s60, s60, 7
          s_and_b32 s61, s59, 7
          s_lshl_b32 s61, s61, 2
          s_add_u32 s60, s60, s61
          s_add_u32 s60, s60, {WS_FH}
          v_mov_b32 v3, 0""")
    lane_mask_off(k, 3, 3, 1, 4)
    k(f"v_mov_b32 v4, {TAG}\ns_waitcnt vmcnt(0)\nbuffer_store_dword v4, v3, {WS}, s60 offen sc1")
    k("s_branch H_S2B")
    k("H_S2N:")
    k("s_waitcnt vmcnt(0)")
    k("H_S2B:")
    k("s_barrier")
    kvdma(5, KVB)
    k("s_cmp_eq_u32 s64, 0\ns_cbranch_scc1 H_S3D")
    def fh_load():
        k(f"""v_and_b32 v3, 7, v0
              v_lshlrev_b32 v3, 2, v3
              s_lshr_b32 s60, s59, 3
              s_lshl_b32 s60, s60, 7
              s_add_u32 s60, s60, {WS_FH}
              buffer_load_dword v11, v3, {WS}, s60 offen sc1""")
    poll(k, "H_PH", fh_load, lambda: k(f"v_cmp_ne_u32 vcc, {TAG}, v11"))
    k(f"""v_and_b32 v3, 7, v0
          v_mul_u32_u24 v3, 7168, v3
          v_lshrrev_b32 v4, 4, v0
          v_lshl_add_u32 v3, v4, 4, v3
          v_and_b32 v4, 8, v0
          v_cmp_eq_u32 vcc, 0, v4
          v_mov_b32 v4, {OOB:#x}
          v_cndmask_b32 v3, v4, v3, vcc
          s_lshr_b32 s60, s59, 3
          s_lshl_b32 s60, s60, 8
          s_add_u32 s60, s60, {WS_H}""")
    for ks in range(4): k(f"buffer_load_dwordx4 {vr(FA+4*ks,4)}, v3, {WS}, s60 offen offset:{ks*64} sc1")
    k(f"""v_lshrrev_b32 v3, 4, v0
          v_bfe_u32 v4, v0, 2, 2
          v_lshl_add_u32 v3, v3, 3, v4
          v_and_b32 v4, 3, v0
          v_lshlrev_b32 v4, 3, v4
          v_lshl_add_u32 v3, v3, 8, v4
          s_lshl_b32 s60, s55, 6
          v_add_u32 v3, s60, v3""")
    for t in range(2):
        for ks in range(4):
            k(f"ds_read_b64_tr_b16 {vr(FB+16*t+4*ks,2)}, v3 offset:{GATE+ks*8192+t*32}")
            k(f"ds_read_b64_tr_b16 {vr(FB+16*t+4*ks+2,2)}, v3 offset:{GATE+ks*8192+1024+t*32}")
    k("s_waitcnt vmcnt(0) lgkmcnt(0)")
    for t in range(2):
        for ks in range(4): k(m16(FC+4*t, FB+16*t+4*ks, FA+4*ks, "0" if ks == 0 else None))
    k(f"""v_and_b32 v3, 7, v0
          v_lshlrev_b32 v3, 12, v3
          v_lshrrev_b32 v4, 4, v0
          v_lshl_add_u32 v3, v4, 4, v3
          v_and_b32 v4, 8, v0
          v_cmp_eq_u32 vcc, 0, v4
          v_mov_b32 v4, {OOB:#x}
          v_cndmask_b32 v3, v4, v3, vcc
          s_lshr_b32 s60, s59, 3
          s_lshl_b32 s60, s60, 15
          s_and_b32 s61, s59, 7
          s_lshl_b32 s61, s61, 9
          s_add_u32 s60, s60, s61
          s_lshl_b32 s61, s55, 7
          s_add_u32 s60, s60, s61
          s_add_u32 s60, s60, {WS_YP}
          buffer_store_dwordx4 {vr(FC,4)}, v3, {WS}, s60 offen sc1
          buffer_store_dwordx4 {vr(FC+4,4)}, v3, {WS}, s60 offen offset:64 sc1""")
    k("s_branch H_S3B")
    k("H_S3D:")
    k("s_waitcnt vmcnt(0)")
    k("H_S3B:")
    k("s_barrier")
    kvdma(6, KVA)
    for s in range(OP_SLOTS):
        k(f"s_add_u32 s65, s54, {s}\ns_and_b32 s65, s65, 15")
        wdma(WO, "s65", OPW + s*16384)
    k(f"s_waitcnt vmcnt({4*OP_SLOTS})\ns_barrier")
    k("s_cmp_eq_u32 s64, 0\ns_cbranch_scc1 H_S4N\ns_cmp_lg_u32 s55, 0\ns_cbranch_scc1 H_S4N")
    k(f"""s_and_b32 s60, s59, 7
          s_lshl_b32 s60, s60, 7
          s_lshr_b32 s61, s59, 3
          s_lshl_b32 s61, s61, 2
          s_add_u32 s60, s60, s61
          s_add_u32 s60, s60, {WS_FY}
          v_mov_b32 v3, 0""")
    lane_mask_off(k, 3, 3, 1, 4)
    k(f"v_mov_b32 v4, {TAG}\nbuffer_store_dword v4, v3, {WS}, s60 offen sc1")
    k("H_S4N:")
    kvdma(7, KVB)
    k("s_waitcnt vmcnt(0)\ns_barrier")
    k("s_cmp_lg_u32 s55, 0\ns_cbranch_scc1 H_K8")
    kvdma(0, KVA)
    k("H_K8:")
    for t in range(2):
        k(f"""s_lshl_b32 s62, s55, 1
              s_add_u32 s62, s62, {t}
              v_readlane_b32 s63, v10, s62
              v_readlane_b32 s66, v8, s62
              s_lshr_b32 s60, s63, 6
              s_cmp_lg_u32 s60, s4
              s_cbranch_scc1 H_Y{t}D""")
        def fy_load():
            k("v_min_u32 v3, 27, v0\nv_lshlrev_b32 v3, 2, v3")
            k(f"s_lshl_b32 s60, s5, 7\ns_add_u32 s60, s60, {WS_FY}\nbuffer_load_dword v11, v3, {WS}, s60 offen sc1")
        poll(k, f"H_PY{t}", fy_load, lambda: k(f"v_cmp_ne_u32 vcc, {TAG}, v11"))
        k(f"""v_and_b32 v3, 31, v0
              v_lshlrev_b32 v3, 4, v3
              v_lshrrev_b32 v4, 5, v0
              v_lshl_add_u32 v4, v4, 15, v3
              s_lshl_b32 s60, s62, 12
              s_lshl_b32 s61, s5, 9
              s_add_u32 s60, s60, s61
              s_add_u32 s60, s60, {WS_YP}""")
        for m in range(14):
            k(f"buffer_load_dwordx4 {vr(16+4*m,4)}, v4, {WS}, s60 offen sc1")
            if m < 13: k("s_add_u32 s60, s60, 65536")
        k(f"""s_lshr_b32 s66, s66, 16
              s_and_b32 s60, s66, 0x7fff
              s_xor_b32 s61, s66, 0xffff
              s_cmp_gt_u32 s66, 0x7fff
              s_cselect_b32 s66, s60, s61
              s_lshl_b32 s66, s66, 16
              v_mov_b32 v12, s66""")
        sigmoid(k, 12, 12)
        k("s_waitcnt vmcnt(0)")
        for m in range(1, 14):
            for c in range(4): k(f"v_add_f32 v{16+c}, v{16+c}, v{16+4*m+c}")
        for c in range(4):
            k(f"v_mov_b32 v{20+c}, v{16+c}\nv_permlane32_swap_b32 v{16+c}, v{20+c}\nv_add_f32 v{16+c}, v{16+c}, v{20+c}\nv_mul_f32 v{16+c}, v{16+c}, v12")
        k(f"s_lshl_b32 s60, s62, 9\ns_add_u32 s60, s60, {YS}\nv_add_u32 v3, s60, v3\nds_write_b128 v3, v[16:19]")
        k(f"H_Y{t}D:")
    k("s_waitcnt vmcnt(0) lgkmcnt(0)\ns_barrier")
    stamp(k, 6)
    k(f"""s_lshl_b32 s60, s4, 1
          s_lshr_b32 s61, s55, 1
          s_add_u32 s60, s60, s61
          s_lshl_b32 s60, s60, 16
          s_and_b32 s61, s55, 1
          s_lshl_b32 s61, s61, 11
          s_add_u32 s60, s60, s61
          s_add_u32 s60, s60, {WS_OF}
          v_add_u32 v6, s60, v2
          s_lshl_b32 s57, s55, 11
          s_add_u32 s57, s57, {OPO}""")
    k("s_barrier")
    stamp(k, 7)
    def fd_load():
        k(f"v_lshlrev_b32 v3, 2, v0\ns_lshl_b32 s60, s4, 8\ns_add_u32 s60, s60, {WS_FD}\nbuffer_load_dword v11, v3, {WS}, s60 offen sc1")
    poll(k, "H_PD", fd_load, lambda: k(f"v_cmp_ne_u32 vcc, {TAG}, v11"))
    stamp(k, 8)
    def odma(slot8_s):
        k(f"s_lshl_b32 s60, s65, 12\ns_add_u32 m0, {slot8_s}, s57")
        k(f"buffer_load_dwordx4 v6, {WS}, s60 offen sc1 lds\nbuffer_load_dwordx4 v6, {WS}, s60 offen offset:1024 sc1 lds")
    for s in range(OP_SLOTS):
        k(f"s_add_u32 s65, s54, {s}\ns_and_b32 s65, s65, 15")
        odma(s*8192)
    k(f"s_waitcnt vmcnt({2*(OP_SLOTS-1)})\ns_barrier")
    def cnt(st): return 2 if st < OP_SLOTS else 6
    for s in range(16):
        pend = sum(cnt(t) for t in range(s + 2, min(s + OP_SLOTS, 16)))
        k(f"s_waitcnt vmcnt({pend})\ns_barrier")
        if s + OP_SLOTS < 16:
            k(f"s_add_u32 s65, s54, {s+OP_SLOTS}\ns_and_b32 s65, s65, 15")
            odma((s % OP_SLOTS) * 8192)
            wdma(WO, "s65", OPW + (s % OP_SLOTS) * 16384)
    dump(k)

def top8(k):
    T = 16
    k(f"s_mov_b32 m0, {KEYS}\ns_mov_b32 s60, {WS_KEYS}")
    for i in range(4): k(f"buffer_load_dwordx4 v2, {WS}, s60 offen offset:{i*1024} sc1 lds")
    k(f"s_mov_b32 m0, {KEYS+4096}\ns_mov_b32 s60, {WS_KEYS+4096}")
    for i in range(4): k(f"buffer_load_dwordx4 v2, {WS}, s60 offen offset:{i*1024} sc1 lds")
    k(f"v_lshlrev_b32 v3, 2, v0\ns_mov_b32 s60, {WS_GMAX}\nbuffer_load_dword v{T}, v3, {WS}, s60 offen sc1")
    k("s_waitcnt vmcnt(0)")
    k(f"v_lshrrev_b32 v{T+3}, 3, v0\nv_mov_b32 v{T+2}, 0")
    for r in range(8):
        k(f"v_mov_b32 v{T+1}, v{T}")
        wave_max_u32(k, T+1)
        k(f"""v_readlane_b32 s60, v{T+1}, 63
              v_cmp_eq_u32 vcc, s60, v{T}
              v_cndmask_b32 v{T}, v{T}, 0, vcc
              v_mov_b32 v{T+4}, s60
              v_cmp_eq_u32 vcc, {r}, v{T+3}
              v_cndmask_b32 v{T+2}, v{T+2}, v{T+4}, vcc""")
    k(f"""v_and_b32 v{T+2}, 0xffff, v{T+2}
          v_sub_u32 v{T+2}, 0xffff, v{T+2}
          v_bfe_u32 v{T+2}, v{T+2}, 5, 6
          v_and_b32 v{T+4}, 7, v0
          v_lshlrev_b32 v{T+4}, 4, v{T+4}
          v_lshl_add_u32 v{T+2}, v{T+2}, 7, v{T+4}
          v_add_u32 v{T+2}, {KEYS}, v{T+2}
          ds_read_b128 {vr(T+8,4)}, v{T+2}
          s_waitcnt lgkmcnt(0)""")
    a, b, c, d = T+8, T+9, T+10, T+11
    def ce(x, y):
        k(f"v_max_u32 v{T+5}, v{x}, v{y}\nv_min_u32 v{y}, v{x}, v{y}\nv_mov_b32 v{x}, v{T+5}")
    ce(a, b); ce(c, d); ce(a, c); ce(b, d); ce(b, c)
    k(f"v_mov_b32 v{T+2}, 0")
    for r in range(8):
        k(f"v_mov_b32 v{T+1}, v{a}")
        wave_max_u32(k, T+1)
        k(f"""v_readlane_b32 s60, v{T+1}, 63
              v_cmp_eq_u32 vcc, s60, v{a}
              v_cndmask_b32 v{a}, v{a}, v{b}, vcc
              v_cndmask_b32 v{b}, v{b}, v{c}, vcc
              v_cndmask_b32 v{c}, v{c}, v{d}, vcc
              v_cndmask_b32 v{d}, v{d}, 0, vcc
              v_writelane_b32 v{T+2}, s60, {r}""")
    k(f"v_lshlrev_b32 v{T+4}, 3, v0\nv_mov_b32 v{T+3}, {TAG}")
    lane_mask_off(k, T+4, T+4, 8, T+5)
    k(f"s_mov_b32 s60, {WS_IDX}\nbuffer_store_dwordx2 {vr(T+2,2)}, v{T+4}, {WS}, s60 offen sc1")

def main(out):
    ref = open(f"cdna_kernels/{NAME}.s.ref").read().split("\n")
    head = [l for l in ref if l.startswith(";") and "@launch" not in l and "Override launch" not in l and "grid=ceil" not in l]
    lines = head + [f"; @launch grid=(256,1,1) block=(768,1,1) lds={LDS_SIZE}", '.amdgcn_target "amdgcn-amd-amdhsa--gfx950"', ".text"]
    body, n = pad_hazards(gen(), verbose=("-v" in sys.argv))
    print(len(body), "lines,", n, "pads")
    lines += body
    lines += ['.section .rodata,"a"', ".p2align 6", f""".amdhsa_kernel {NAME}_kernel
  .amdhsa_next_free_vgpr {NVGPR}
  .amdhsa_next_free_sgpr 102
  .amdhsa_accum_offset {NVGPR}
  .amdhsa_group_segment_fixed_size 0
  .amdhsa_kernarg_size 112
  .amdhsa_user_sgpr_count 2
  .amdhsa_user_sgpr_kernarg_segment_ptr 1
  .amdhsa_system_sgpr_workgroup_id_x 1
.end_amdhsa_kernel"""]
    open(out, "w").write("\n".join(lines) + "\n")

if __name__ == "__main__":
    main(sys.argv[1] if len(sys.argv) > 1 and not sys.argv[1].startswith("-") else f"fused.s")
```

```python
import sys, math, struct
sys.path.insert(0, "gen")
from asmlib import pad_hazards

NAME = "gated_mix__grouped_kv_mqa__moe_arch_mod__prompt"
INSTR = "-i" in sys.argv

WS_OF = 0x400000
WS_KV = 0x800000
WS_G = 0x840000
WS_KEYS = 0x842000
WS_GMAX = 0x844000
WS_IDX = 0x845000
WS_EPOCH = 0x845800
WS_FA = 0x846000
WS_FH = 0x847000
WS_H = 0x848000
WS_FY = 0x856000
WS_FD = 0x857000
WS_YP = 0x860000
WS_DBG = 0xA00000
WS_SIZE = 0x1000000
OOB = 0x40000000
SPIN = 20000

def f2u(x): return struct.unpack("<I", struct.pack("<f", x))[0]
LOG2E = 1.4426950408889634
QSCALE = LOG2E / math.sqrt(32.0)

class K:
    def __init__(self): self.l = []
    def __call__(self, s):
        for x in s.strip("\n").split("\n"):
            x = x.strip()
            if not x: continue
            self.l.append(x if x.endswith(":") or x.startswith(".") else "    " + x)

def vr(b, n): return f"v[{b}:{b+n-1}]"
def m32(d, a, b, c=None):
    cc = vr(d, 16) if c is None else (c if isinstance(c, str) else vr(c, 16))
    return f"v_mfma_f32_32x32x16_bf16 {vr(d,16)}, {vr(a,4)}, {vr(b,4)}, {cc}"
def m16(d, a, b, c=None):
    cc = vr(d, 4) if c is None else (c if isinstance(c, str) else vr(c, 4))
    return f"v_mfma_f32_16x16x32_bf16 {vr(d,4)}, {vr(a,4)}, {vr(b,4)}, {cc}"

NST = 14
def stamp(k, n, cyc=False):
    op = "s_memtime" if (n in (0, NST) or cyc) else "s_memrealtime"
    if INSTR: k(f"{op} s[82:83]\ns_waitcnt lgkmcnt(0)\ns_mov_b32 s{84+n}, s82")
def stamp_rt(k, n):
    if INSTR: k(f"s_memrealtime s[82:83]\ns_waitcnt lgkmcnt(0)\ns_mov_b32 s{84+n}, s82")
def dump(k):
    if INSTR:
        stamp(k, NST); stamp_rt(k, NST + 1)
        k(f"s_lshl_b32 s82, s2, 4\ns_add_u32 s82, s82, s3\ns_lshl_b32 s82, s82, 6\ns_add_u32 s82, s82, {WS_DBG}")
        k("v_mov_b32 v4, 0")
        for i in range(16): k(f"v_writelane_b32 v4, s{84+i}, {i}")
        k(f"v_lshlrev_b32 v3, 2, v0\nv_mov_b32 v5, {OOB:#x}\nv_cmp_gt_u32 vcc, 16, v0\nv_cndmask_b32 v3, v5, v3, vcc")
        k(f"buffer_store_dword v4, v3, s[20:23], s82 offen")

X, WQ, E, WS, WO, OUT, WG, WU, WD, WR, GW = "s[8:11]", "s[12:15]", "s[16:19]", "s[20:23]", "s[24:27]", "s[28:31]", "s[32:35]", "s[36:39]", "s[40:43]", "s[44:47]", "s[48:51]"
TAG = "s52"
XR, ELO, EHI = 0, 65536, 98304
P2_STAGE = 20480
P2_SLOT = [131072, 65536, 86016, 106496]
KVA, KVB = 131072, 98304
GATE, UP, DOWN, KEYS, YS = 0, 32768, 65536, 0, 94208
OP_SLOTS = 5
OPW, OPO = 0, 98304
LDS_SIZE = 163840
Q0, Q1 = 8, 12
CM = 16
SA, SB = 32, 48
P = 64
O = 72
L = 88
ONES = 92
KF = 96
VF = 104
SIDX = 113
NVGPR = 128

def smsum(): return f"v_smfmac_f32_16x16x64_bf16 {vr(L,4)}, {vr(ONES,4)}, {vr(P,8)}, v{SIDX}"

def attn_iter(k, i, S, Sn, waits=True):
    u = ((i + 2) & 7) * 4096
    Ex = lambda j: k(f"v_exp_f32 v{S+j}, v{S+j}")
    C = lambda j: k(f"v_cvt_pk_bf16_f32 v{P+j}, v{S+2*j}, v{S+2*j+1}")
    R = lambda d, o: k(f"ds_read_b128 {vr(d,4)}, v1 offset:{u+o}")
    if waits: k("s_waitcnt lgkmcnt(0)")
    k(m32(Sn, KF, Q0, CM)); R(KF, 0); Ex(0); Ex(1); Ex(2); C(0)
    k(m32(O, VF+4, P+4)); R(VF+4, 3072); Ex(3); Ex(4); C(1); Ex(5)
    k(m32(Sn, KF+4, Q1)); R(KF+4, 1024); Ex(6); C(2); Ex(7); Ex(8); C(3); Ex(9); Ex(10)
    k(m32(O, VF, P)); R(VF, 2048); Ex(11); Ex(12); Ex(13)
    k(smsum()); C(4); C(5); Ex(14); Ex(15); C(6); C(7)

def wave_max_u32(k, v, full=True):
    k(f"""v_max_u32_dpp v{v}, v{v}, v{v} row_shr:1 row_mask:0xf bank_mask:0xf
          v_max_u32_dpp v{v}, v{v}, v{v} row_shr:2 row_mask:0xf bank_mask:0xf
          v_max_u32_dpp v{v}, v{v}, v{v} row_shr:4 row_mask:0xf bank_mask:0xf
          v_max_u32_dpp v{v}, v{v}, v{v} row_shr:8 row_mask:0xf bank_mask:0xf
          v_max_u32_dpp v{v}, v{v}, v{v} row_bcast:15 row_mask:0xa bank_mask:0xf""")
    if full: k(f"v_max_u32_dpp v{v}, v{v}, v{v} row_bcast:31 row_mask:0xc bank_mask:0xf")

def lane_mask_off(k, dst, src, n, tmp):
    k(f"v_mov_b32 v{tmp}, {OOB:#x}\nv_cmp_gt_u32 vcc, {n}, v0\nv_cndmask_b32 v{dst}, v{tmp}, v{src}, vcc")

def sigmoid(k, d, s):
    k(f"v_mul_f32 v{d}, {f2u(-LOG2E):#x}, v{s}\nv_exp_f32 v{d}, v{d}\nv_add_f32 v{d}, 1.0, v{d}\nv_rcp_f32 v{d}, v{d}")

def poll(k, label, load, bad):
    k(f"s_mov_b32 s79, {SPIN}")
    k(f"{label}_L:")
    load()
    k("s_waitcnt vmcnt(0)")
    bad()
    k(f"""s_cbranch_vccz {label}_G
          s_sub_u32 s79, s79, 1
          s_cmp_eq_u32 s79, 0
          s_cbranch_scc1 {label}_G
          s_sleep 4
          s_branch {label}_L""")
    k(f"{label}_G:")

def gen():
    k = K()
    kn = NAME + "_kernel"
    k(f".globl {kn}\n.p2align 8\n.type {kn},@function\n{kn}:")
    if INSTR:
        for i in range(16): k(f"s_mov_b32 s{84+i}, 0")
    stamp(k, 0); stamp_rt(k, 1)
    k("s_cmp_ge_u32 s2, 256\ns_cbranch_scc1 L_END")
    k("""s_load_dwordx2 s[8:9], s[0:1], 0
         s_load_dwordx2 s[12:13], s[0:1], 8
         s_load_dwordx4 s[56:59], s[0:1], 16
         s_load_dwordx2 s[20:21], s[0:1], 104
         s_load_dwordx2 s[24:25], s[0:1], 32
         s_load_dwordx2 s[28:29], s[0:1], 88
         s_load_dwordx2 s[32:33], s[0:1], 56
         s_load_dwordx2 s[36:37], s[0:1], 64
         s_load_dwordx2 s[40:41], s[0:1], 72
         s_load_dwordx2 s[44:45], s[0:1], 48
         s_load_dwordx2 s[48:49], s[0:1], 80
         v_lshrrev_b32 v1, 6, v0
         v_and_b32 v0, 63, v0
         v_readfirstlane_b32 s3, v1""")
    k("""s_and_b32 s6, s2, 1
         s_bfe_u32 s7, s2, 0x20003
         s_lshl_b32 s5, s6, 2
         s_add_u32 s5, s5, s7
         s_bfe_u32 s4, s2, 0x20001
         s_lshl_b32 s4, s4, 3
         s_lshr_b32 s53, s2, 5
         s_add_u32 s4, s4, s53""")
    for d, size in ((8, 0x400000), (12, 0x200000), (16, 0x10000), (20, WS_SIZE), (24, 0x200000), (28, 0x400000),
                    (32, 0x700000), (36, 0x700000), (40, 0x700000), (44, 2048), (48, 2048)):
        k(f"s_mov_b32 s{d+2}, {size:#x}\ns_mov_b32 s{d+3}, 0x20000")
    k("v_lshlrev_b32 v2, 4, v0")
    k("s_lshl_b32 s54, s7, 1\ns_add_u32 s54, s54, s4\ns_lshl_b32 s54, s54, 1\ns_and_b32 s54, s54, 15")
    k("s_waitcnt lgkmcnt(0)")
    k("s_cmp_eq_u32 s7, 0\ns_cselect_b32 s16, s56, s58\ns_cselect_b32 s17, s57, s59")
    k(f"s_add_u32 s56, s20, {WS_EPOCH}\ns_addc_u32 s57, s21, 0\ns_load_dword s52, s[56:57], 0")
    k("s_cmp_ge_u32 s3, 8\ns_cbranch_scc1 H_START")
    compute(k)
    helper(k)
    k("L_END:\ns_endpgm")
    return k.l

def mk_tag(k):
    k(f"s_waitcnt lgkmcnt(0)\ns_mul_i32 s52, s52, 0x9e3779b1\ns_add_u32 s52, s52, 0x7f4a7c15")

def compute(k):
    k("s_lshr_b32 s55, s3, 2\ns_and_b32 s56, s3, 3")
    k("""v_lshrrev_b32 v3, 4, v0
         v_and_b32 v4, 15, v0
         v_xor_b32 v4, v4, v3
         v_lshlrev_b32 v4, 4, v4
         v_lshl_add_u32 v5, v3, 11, v4
         s_lshl_b32 s57, s4, 1
         s_add_u32 s57, s57, s6
         s_lshl_b32 s57, s57, 16
         s_lshl_b32 s58, s3, 8
         s_add_u32 s57, s57, s58
         s_lshl_b32 s58, s3, 13
         s_lshl_b32 s59, s7, 1""")
    for i in range(8):
        k(f"""s_add_u32 s60, s59, {i}
              s_and_b32 s60, s60, 7
              s_lshl_b32 s61, s60, 10
              s_add_u32 m0, s58, s61
              s_lshl_b32 s61, s60, 13
              s_add_u32 s61, s61, s57
              s_and_b32 s60, s60, 3
              s_lshl_b32 s60, s60, 6
              v_xor_b32 v6, s60, v5
              buffer_load_dwordx4 v6, {X}, s61 offen lds""")
    k("s_lshl_b32 s62, s3, 12")
    k("s_cmp_eq_u32 s7, 3\ns_cbranch_scc1 C_F1LD\ns_cmp_eq_u32 s7, 2\ns_cbranch_scc1 C_F1RG")
    k("s_lshl_b32 s57, s3, 13")
    for i in range(8):
        k(f"""s_add_u32 s60, s4, {i}
              s_and_b32 s60, s60, 7
              s_lshl_b32 s61, s60, 10
              s_add_u32 s61, s61, s57
              s_and_b32 s63, s60, 3
              s_lshl_b32 s63, s63, 10
              s_lshr_b32 s60, s60, 2
              s_lshl_b32 s60, s60, 15
              s_add_u32 s63, s63, s60
              s_add_u32 s63, s63, s62
              s_add_u32 m0, s63, {ELO}
              buffer_load_dwordx4 v2, {E}, s61 offen lds""")
    k("s_branch C_F1LD")
    k("C_F1RG:")
    lane_mask_off(k, 6, 2, 16, 7)
    k(f"""s_lshl_b32 s57, s3, 8
          s_add_u32 m0, s62, {ELO}
          buffer_load_dwordx4 v6, {WR}, s57 offen lds
          s_add_u32 m0, s62, {ELO+1024}
          buffer_load_dwordx4 v6, {GW}, s57 offen lds""")
    k("C_F1LD:")
    k("""v_lshrrev_b32 v3, 5, v0
         v_bfe_u32 v4, v0, 2, 2
         v_bfe_u32 v5, v0, 4, 1
         v_lshlrev_b32 v5, 5, v5
         v_and_b32 v6, 3, v0
         v_lshl_add_u32 v5, v6, 3, v5""")
    k("""v_and_b32 v8, 31, v0
         v_and_b32 v9, 15, v0
         v_xor_b32 v9, v9, v3
         v_lshlrev_b32 v9, 4, v9
         v_lshl_add_u32 v6, v8, 8, v9
         v_bfe_u32 v9, v0, 1, 3
         v_xor_b32 v9, v9, v3
         v_lshlrev_b32 v9, 4, v9
         v_lshl_add_u32 v7, v8, 7, v9""")
    mk_tag(k)
    k("s_cmp_eq_u32 s7, 3\ns_cbranch_scc1 C_F1A")
    k("v_add_u32 v8, s58, v6")
    k("s_cmp_eq_u32 s7, 2\ns_cbranch_scc1 C_F1RG2")
    k(f"""v_lshl_add_u32 v9, v3, 3, v4
          v_lshl_add_u32 v9, v9, 6, v5
          s_add_u32 s60, s62, {ELO}
          v_add_u32 v9, s60, v9
          s_waitcnt vmcnt(0)""")
    for ks in range(8):
        k(f"v_xor_b32 v10, {ks*32}, v8\nds_read_b128 {vr(32+4*ks,4)}, v10")
        off = (ks & 3) * 1024 + (ks >> 2) * 32768
        k(f"ds_read_b64_tr_b16 {vr(64+4*ks,2)}, v9 offset:{off}\nds_read_b64_tr_b16 {vr(66+4*ks,2)}, v9 offset:{off+256}")
    k("s_branch C_F1MM")
    k("C_F1RG2:")
    k(f"""v_and_b32 v9, 31, v0
          v_mov_b32 v10, 256
          v_cmp_eq_u32 vcc, 0, v9
          v_cndmask_b32 v10, v10, 0, vcc
          v_mov_b32 v11, 1024
          v_cmp_eq_u32 vcc, 1, v9
          v_cndmask_b32 v10, v10, v11, vcc
          v_lshl_add_u32 v9, v3, 4, v10
          s_add_u32 s60, s62, {ELO}
          v_add_u32 v9, s60, v9
          s_waitcnt vmcnt(0)""")
    for ks in range(8):
        k(f"v_xor_b32 v10, {ks*32}, v8\nds_read_b128 {vr(32+4*ks,4)}, v10")
        k(f"ds_read_b128 {vr(64+4*ks,4)}, v9 offset:{ks*32}")
    k("C_F1MM:")
    k("s_waitcnt lgkmcnt(0)")
    k("s_cmp_eq_u32 s7, 1\ns_cbranch_scc1 C_F1V")
    for ks in range(8): k(m32(16, 64+4*ks, 32+4*ks, "0" if ks == 0 else None))
    k("s_branch C_F1W")
    k("C_F1V:")
    for ks in range(8): k(m32(16, 32+4*ks, 64+4*ks, "0" if ks == 0 else None))
    k("C_F1W:")
    k(f"s_add_u32 s60, s62, {EHI}\nv_add_u32 v9, s60, v2")
    for q in range(4): k(f"ds_write_b128 v9, {vr(16+4*q,4)} offset:{q*1024}")
    k("C_F1A:")
    k("s_waitcnt vmcnt(0) lgkmcnt(0)")
    stamp(k, 2)
    k("s_barrier")
    k("s_cmp_ge_u32 s3, 2\ns_cbranch_scc1 C_F1B")
    k(f"s_lshl_b32 s60, s2, 3\ns_lshl_b32 s61, s3, 2\ns_add_u32 s60, s60, s61\ns_add_u32 s63, s60, {WS_FA}")
    k("s_cmp_eq_u32 s7, 3\ns_cbranch_scc1 C_F1B")
    k(f"s_lshl_b32 s60, s3, 11\ns_add_u32 s60, s60, {EHI}\nv_add_u32 v9, s60, v2")
    for w in range(8):
        k(f"ds_read_b128 {vr(32+8*w,4)}, v9 offset:{w*4096}\nds_read_b128 {vr(36+8*w,4)}, v9 offset:{w*4096+1024}")
    for w in range(1, 8):
        k(f"s_waitcnt lgkmcnt({14-2*w})")
        for j in range(8): k(f"v_add_f32 v{32+j}, v{32+j}, v{32+8*w+j}")
    k("C_F1B:")
    k("s_barrier")
    k("""v_lshl_add_u32 v8, v3, 3, v4
         v_xor_b32 v9, s56, v4
         v_lshl_add_u32 v9, v9, 6, v5
         v_lshl_add_u32 v10, v8, 8, v9
         s_cmp_eq_u32 s55, s6
         s_cselect_b32 s64, 1, 0
         s_cbranch_scc1 C_P2X
         v_mov_b32 v6, v7""")
    k("C_P2X:")
    XB = [96, 64]; WB = [112, 80]
    xa = [12, 13, 14, 15]
    def p2_addr(stage_expr_sreg, slot):
        k(f"""s_add_u32 s65, {stage_expr_sreg}, s54
              s_and_b32 s65, s65, 15
              s_and_b32 s66, s65, 1
              s_lshl_b32 s66, s66, 7
              s_lshr_b32 s65, s65, 1
              s_lshl_b32 s65, s65, 13
              s_cmp_eq_u32 s64, 1
              s_cselect_b32 s66, s66, 0
              s_cselect_b32 s65, s65, {slot+16384}
              v_xor_b32 v12, s66, v6
              v_add_u32 v12, s65, v12
              v_add_u32 v11, {slot}, v10
              v_xor_b32 v13, 32, v12
              v_xor_b32 v14, 64, v12
              v_xor_b32 v15, 96, v12""")
    def p2_reads(b):
        r = []
        for ks in range(4):
            r.append(f"ds_read_b128 {vr(XB[b]+4*ks,4)}, v{xa[ks]}")
            r.append(f"ds_read_b64_tr_b16 {vr(WB[b]+4*ks,2)}, v11 offset:{ks*4096}")
            r.append(f"ds_read_b64_tr_b16 {vr(WB[b]+2+4*ks,2)}, v11 offset:{ks*4096+1024}")
        return r
    k("s_mov_b32 s67, 0")
    p2_addr("s67", P2_SLOT[0])
    for r in p2_reads(0): k(r)
    k("s_cmp_ge_u32 s3, 2\ns_cbranch_scc1 C_PUBD")
    k("s_cmp_eq_u32 s7, 3\ns_cbranch_scc1 C_PUBF")
    k("s_lshl_b32 s60, s4, 1\ns_add_u32 s60, s60, s6")
    k("s_cmp_eq_u32 s7, 2\ns_cbranch_scc1 C_PUBR")
    for i in range(4): k(f"v_cvt_pk_bf16_f32 v{40+i}, v{32+2*i}, v{33+2*i}")
    k(f"""s_add_u32 s61, s60, 1
          s_add_u32 s61, s61, s3
          s_and_b32 s61, s61, 63
          s_lshl_b32 s61, s61, 12
          s_add_u32 s61, s61, 2048
          s_lshl_b32 s60, s60, 12
          s_cmp_eq_u32 s7, 0
          s_cselect_b32 s60, s60, s61
          s_lshl_b32 s61, s3, 10
          s_add_u32 s60, s60, s61
          s_add_u32 s60, s60, {WS_KV}
          buffer_store_dwordx4 v[40:43], v2, {WS}, s60 offen sc1
          s_branch C_PUBF""")
    k("C_PUBR:")
    k("s_cmp_eq_u32 s3, 1\ns_cbranch_scc1 C_PUBF")
    k(f"""s_lshl_b32 s61, s60, 5
          v_add_u32 v40, s61, v0
          v_cvt_pk_bf16_f32 v41, v32, v32
          v_and_b32 v41, 0xffff, v41
          v_xor_b32 v42, 0xffff, v41
          v_or_b32 v43, 0x8000, v41
          v_cmp_lt_u32 vcc, 0x7fff, v41
          v_cndmask_b32 v41, v43, v42, vcc
          v_sub_u32 v42, 0xffff, v40
          v_lshl_or_b32 v41, v41, 16, v42""")
    sigmoid(k, 44, 33)
    k("v_lshlrev_b32 v40, 2, v40")
    lane_mask_off(k, 40, 40, 32, 45)
    k(f"""s_mov_b32 s61, {WS_KEYS}
          buffer_store_dword v41, v40, {WS}, s61 offen sc1
          s_mov_b32 s61, {WS_G}
          buffer_store_dword v44, v40, {WS}, s61 offen sc1
          v_mov_b32 v46, v41""")
    wave_max_u32(k, 46, full=False)
    k(f"""v_cmp_eq_u32 vcc, 31, v0
          v_cndmask_b32 v47, v45, 0, vcc
          s_lshl_b32 s60, s60, 2
          s_add_u32 s60, s60, {WS_GMAX}
          buffer_store_dword v46, v47, {WS}, s60 offen sc1""")
    k("C_PUBF:")
    k("v_mov_b32 v40, 0")
    lane_mask_off(k, 40, 40, 1, 41)
    k(f"""v_mov_b32 v41, {TAG}
          s_waitcnt vmcnt(0)
          buffer_store_dword v41, v40, {WS}, s63 offen sc1""")
    k("C_PUBD:")
    stamp(k, 3)
    for i in range(16): k(f"v_mov_b32 v{16+i}, 0")
    p2_addr(1, P2_SLOT[1])
    k("C_P2L:")
    for q in range(4):
        b = q & 1
        k("s_waitcnt lgkmcnt(0)\ns_barrier")
        rd = p2_reads(1 - b)
        mf = [m32(16, WB[b]+4*ks, XB[b]+4*ks) for ks in range(4)]
        k(mf[0])
        for r in rd[:6]: k(r)
        k(mf[1])
        for r in rd[6:]: k(r)
        k(mf[2])
        k(f"s_add_u32 s68, s67, {q+2}")
        p2_addr("s68", P2_SLOT[(q + 2) & 3])
        k(mf[3])
    k("s_add_u32 s67, s67, 4\ns_cmp_lt_u32 s67, 16\ns_cbranch_scc1 C_P2L")
    stamp(k, 4)
    k(f"s_mov_b32 s60, {f2u(QSCALE):#x}")
    for i in range(16): k(f"v_mul_f32 v{16+i}, s60, v{16+i}")
    k("s_waitcnt lgkmcnt(0)")
    for i in range(8): k(f"v_cvt_pk_bf16_f32 v{Q0+i}, v{16+2*i}, v{17+2*i}")
    k(f"""v_and_b32 v6, 4, v0
          v_cmp_eq_u32 vcc, 0, v6
          v_mov_b32 v7, 0x3f803f80
          v_cndmask_b32 v{ONES}, 0, v7, vcc
          v_cndmask_b32 v{ONES+2}, v7, 0, vcc
          v_mov_b32 v{ONES+1}, v{ONES}
          v_mov_b32 v{ONES+3}, v{ONES+2}
          v_and_b32 v6, 1, v0
          v_cmp_eq_u32 vcc, 0, v6
          v_mov_b32 v6, 0x44444444
          v_mov_b32 v7, 0xeeeeeeee
          v_cndmask_b32 v{SIDX}, v7, v6, vcc
          v_add_u32 v1, {KVA}, v2""")
    for i in range(16): k(f"v_mov_b32 v{O+i}, 0")
    for i in range(4): k(f"v_mov_b32 v{L+i}, 0\nv_mov_b32 v{P+4+i}, 0")
    k("s_barrier")
    stamp(k, 5); stamp(k, 10, True)
    k(f"""ds_read_b128 {vr(VF,4)}, v1
          ds_read_b128 {vr(VF+4,4)}, v1 offset:1024
          ds_read_b128 {vr(KF,4)}, v1 offset:4096
          s_waitcnt lgkmcnt(1)""")
    k(m32(SA, VF, Q0, "0")); k(m32(SA, VF+4, Q1))
    k(f"""ds_read_b128 {vr(VF+4,4)}, v1 offset:{4096+3072}
          ds_read_b128 {vr(KF+4,4)}, v1 offset:{4096+1024}
          ds_read_b128 {vr(VF,4)}, v1 offset:{4096+2048}""")
    k(f"v_max3_f32 v6, v{SA}, v{SA+1}, v{SA+2}")
    for j in range(3, 15, 2): k(f"v_max3_f32 v6, v6, v{SA+j}, v{SA+j+1}")
    k(f"v_max_f32 v6, v6, v{SA+15}")
    k("v_mov_b32 v7, v6\nv_permlane32_swap_b32 v6, v7\nv_max_f32 v6, v6, v7")
    k(f"v_sub_f32 v{CM}, 0, v6")
    for j in range(1, 16): k(f"v_mov_b32 v{CM+j}, v{CM}")
    for j in range(16): k(f"v_sub_f32 v{SA+j}, v{SA+j}, v6")
    k("s_mov_b32 s67, 0\ns_setprio 2")
    k(".p2align 6")
    k("C_AL:")
    bufs = [SA, SB]
    for i in range(6):
        if i == 3: k("s_setprio 1")
        if i == 5: k("s_setprio 0")
        attn_iter(k, i, bufs[i & 1], bufs[(i + 1) & 1])
    if INSTR: k("s_memtime s[80:81]")
    k(f"s_waitcnt lgkmcnt(0)\ns_barrier\nv_xor_b32 v1, {KVA ^ KVB:#x}, v1\ns_setprio 2")
    if INSTR: k("s_memtime s[82:83]\ns_waitcnt lgkmcnt(0)\ns_sub_u32 s82, s82, s80\ns_add_u32 s96, s96, s82")
    attn_iter(k, 6, bufs[0], bufs[1], waits=False)
    attn_iter(k, 7, bufs[1], bufs[0])
    k("s_add_u32 s67, s67, 1\ns_cmp_lt_u32 s67, 8\ns_cbranch_scc1 C_AL")
    stamp(k, 6); stamp(k, 11, True)
    for j in range(4): k(f"v_mov_b32 v{P+j}, 0")
    k("s_waitcnt lgkmcnt(0)\ns_barrier")
    k(m32(O, VF+4, P+4)); k(smsum())
    k(f"v_add_f32 v{L}, v{L}, v{L+1}")
    k(f"v_add_f32 v6, abs(v{O}), abs(v{O+1})")
    for j in range(2, 16): k(f"v_add_f32 v6, v6, abs(v{O+j})")
    k(f"v_mov_b32 v7, 0x5d800000\nv_cmp_nlt_f32 vcc, v{L}, v7\ns_mov_b64 s[60:61], vcc")
    k("v_mov_b32 v7, 0x7f000000\nv_cmp_nlt_f32 vcc, v6, v7\ns_or_b64 s[60:61], s[60:61], vcc")
    k("s_cmp_lg_u64 s[60:61], 0\ns_cbranch_scc1 C_SLOW")
    k("C_FIN:")
    k(f"v_rcp_f32 v6, v{L}")
    for j in range(16): k(f"v_mul_f32 v{O+j}, v{O+j}, v6")
    for j in range(8): k(f"v_cvt_pk_bf16_f32 v{P+j}, v{O+2*j}, v{O+2*j+1}")
    k(f"""s_lshl_b32 s60, s4, 1
          s_add_u32 s60, s60, s55
          s_lshl_b32 s69, s60, 5
          s_lshl_b32 s61, s5, 2
          s_add_u32 s60, s69, s61
          s_add_u32 s60, s60, s56
          s_lshl_b32 s60, s60, 11
          s_add_u32 s60, s60, {WS_OF}
          buffer_store_dwordx4 {vr(P,4)}, v2, {WS}, s60 offen sc1
          buffer_store_dwordx4 {vr(P+4,4)}, v2, {WS}, s60 offen offset:1024 sc1
          s_lshl_b32 s60, s4, 3
          s_add_u32 s60, s60, s5
          s_lshl_b32 s60, s60, 3
          s_add_u32 s60, s60, s3
          s_lshl_b32 s60, s60, 2
          s_add_u32 s60, s60, {WS_FD}
          v_mov_b32 v6, 0""")
    lane_mask_off(k, 6, 6, 1, 7)
    k(f"""v_mov_b32 v7, {TAG}
          s_waitcnt vmcnt(0)
          buffer_store_dword v7, v6, {WS}, s60 offen sc1""")
    stamp(k, 7)
    k(f"""v_and_b32 v8, 31, v0
          v_add_u32 v8, s69, v8
          v_lshlrev_b32 v9, 2, v8
          v_lshlrev_b32 v7, 11, v8
          v_lshl_add_u32 v7, v3, 3, v7
          s_lshl_b32 s60, s5, 8
          s_lshl_b32 s61, s56, 6
          s_add_u32 s70, s60, s61
          s_mov_b32 s60, {WS_G}
          buffer_load_dword v40, v9, {WS}, s60 offen sc1""")
    for g in range(4): k(f"buffer_load_dwordx2 {vr(32+2*g,2)}, v7, {X}, s70 offen offset:{g*16}")
    k(f"""v_lshl_add_u32 v9, v3, 2, v4
          v_xor_b32 v10, s56, v4
          v_lshl_add_u32 v10, v10, 6, v5
          v_lshl_add_u32 v10, v9, 8, v10
          s_lshl_b32 s60, s55, 12
          s_add_u32 s60, s60, {OPO}
          v_add_u32 v6, s60, v2""")
    for i in range(16): k(f"v_mov_b32 v{16+i}, 0")
    def op_addr():
        k("s_lshl_b32 s65, s66, 1\nv_add_u32 v11, s65, v10\nv_add_u32 v12, s66, v6")
        k(f"s_add_u32 s66, s66, 8192\ns_cmp_eq_u32 s66, {8192*OP_SLOTS}\ns_cselect_b32 s66, 0, s66")
    def op_reads(b):
        r = []
        for ks in range(4):
            r.append(f"ds_read_b128 {vr(XB[b]+4*ks,4)}, v12 offset:{ks*1024}")
            r.append(f"ds_read_b64_tr_b16 {vr(WB[b]+4*ks,2)}, v11 offset:{ks*4096}")
            r.append(f"ds_read_b64_tr_b16 {vr(WB[b]+2+4*ks,2)}, v11 offset:{ks*4096+2048}")
        return r
    k("s_mov_b32 s66, 0\ns_mov_b32 s67, 0")
    op_addr()
    k("s_barrier")
    stamp(k, 8)
    for r in op_reads(0): k(r)
    op_addr()
    k("C_OL:")
    for b in range(2):
        k("s_waitcnt lgkmcnt(0)\ns_barrier")
        rd = op_reads(1 - b)
        mf = [m32(16, WB[b]+4*ks, XB[b]+4*ks) for ks in range(4)]
        k(mf[0])
        for r in rd[:6]: k(r)
        k(mf[1])
        for r in rd[6:]: k(r)
        k(mf[2])
        op_addr()
        k(mf[3])
    k("s_add_u32 s67, s67, 2\ns_cmp_lt_u32 s67, 16\ns_cbranch_scc1 C_OL")
    stamp(k, 9)
    k("s_waitcnt vmcnt(0) lgkmcnt(0)")
    k(f"v_mov_b32 v9, {YS-64}\nds_read_b128 v[64:67], v9\nds_read_b128 v[68:71], v9 offset:16")
    for g in range(4):
        for d in range(2):
            k(f"v_lshlrev_b32 v{44+4*g+2*d}, 16, v{32+2*g+d}")
            k(f"v_and_b32 v{45+4*g+2*d}, 0xffff0000, v{32+2*g+d}")
    k("v_mov_b32 v9, -1\ns_waitcnt lgkmcnt(0)")
    for i in range(8):
        k(f"v_cmp_eq_u32 vcc, v{64+i}, v8\nv_cndmask_b32 v9, v9, {i}, vcc")
    k("v_cmp_ne_u32 vcc, -1, v9\ns_cbranch_vccz C_NOSEL")
    k(f"""v_and_b32 v11, 7, v9
          v_lshlrev_b32 v11, 9, v11
          v_lshl_add_u32 v11, v3, 4, v11
          s_lshl_b32 s60, s56, 7
          s_add_u32 s60, s60, {YS}
          v_add_u32 v11, s60, v11""")
    for g in range(4): k(f"ds_read_b128 {vr(64+4*g,4)}, v11 offset:{g*32}")
    k("s_waitcnt lgkmcnt(0)")
    for i in range(16): k(f"v_add_f32 v{64+i}, v{64+i}, v{44+i}\nv_cndmask_b32 v{44+i}, v{44+i}, v{64+i}, vcc")
    k("C_NOSEL:")
    k("v_sub_f32 v41, 1.0, v40")
    for i in range(16):
        k(f"v_mul_f32 v{44+i}, v41, v{44+i}")
        k(f"v_fma_f32 v{44+i}, v40, v{16+i}, v{44+i}")
    for i in range(8): k(f"v_cvt_pk_bf16_f32 v{64+i}, v{44+2*i}, v{45+2*i}")
    for g in range(4): k(f"buffer_store_dwordx2 {vr(64+2*g,2)}, v7, {OUT}, s70 offen offset:{g*16}")
    k("s_or_b32 s60, s2, s3\ns_cmp_lg_u32 s60, 0\ns_cbranch_scc1 C_DONE")
    k("v_mov_b32 v6, 0")
    lane_mask_off(k, 6, 6, 1, 9)
    k(f"v_mov_b32 v9, {TAG}\ns_mov_b32 s60, {WS_EPOCH}\nbuffer_store_dword v9, v6, {WS}, s60 offen sc1")
    k("C_DONE:")
    dump(k)
    k("s_endpgm")
    k("C_SLOW:")
    k("v_mov_b32 v112, 0xff800000")
    for i in range(16): k(f"v_mov_b32 v{O+i}, 0")
    for i in range(4): k(f"v_mov_b32 v{L+i}, 0")
    k("s_mov_b32 s67, 0")
    k("C_SL:")
    k(f"""s_lshl_b32 s60, s67, 12
          s_add_u32 s61, s60, 4096
          s_and_b32 s61, s61, 0x3ffff
          s_add_u32 s62, s60, 8192
          s_and_b32 s62, s62, 0x3ffff
          s_add_u32 s60, s60, {WS_KV}
          s_add_u32 s61, s61, {WS_KV}
          s_add_u32 s62, s62, {WS_KV}
          buffer_load_dwordx4 {vr(KF,4)}, v2, {WS}, s60 offen sc1
          buffer_load_dwordx4 {vr(KF+4,4)}, v2, {WS}, s60 offen offset:1024 sc1
          buffer_load_dwordx4 {vr(VF,4)}, v2, {WS}, s61 offen offset:2048 sc1
          buffer_load_dwordx4 {vr(VF+4,4)}, v2, {WS}, s62 offen offset:3072 sc1
          s_waitcnt vmcnt(0)""")
    k(m32(SA, KF, Q0, "0")); k(m32(SA, KF+4, Q1))
    k(f"v_max3_f32 v6, v{SA}, v{SA+1}, v{SA+2}")
    for j in range(3, 15, 2): k(f"v_max3_f32 v6, v6, v{SA+j}, v{SA+j+1}")
    k(f"v_max_f32 v6, v6, v{SA+15}")
    k("v_mov_b32 v7, v6\nv_permlane32_swap_b32 v6, v7\nv_max3_f32 v6, v6, v7, v112")
    k("v_sub_f32 v7, v112, v6\nv_exp_f32 v7, v7\nv_mov_b32 v112, v6")
    for j in range(16): k(f"v_mul_f32 v{O+j}, v{O+j}, v7")
    for j in range(4): k(f"v_mul_f32 v{L+j}, v{L+j}, v7")
    for j in range(16): k(f"v_sub_f32 v{SA+j}, v{SA+j}, v6\nv_exp_f32 v{SA+j}, v{SA+j}")
    for j in range(8): k(f"v_cvt_pk_bf16_f32 v{P+j}, v{SA+2*j}, v{SA+2*j+1}")
    k(m32(O, VF, P)); k(m32(O, VF+4, P+4)); k(smsum())
    k("s_add_u32 s67, s67, 1\ns_cmp_lt_u32 s67, 64\ns_cbranch_scc1 C_SL")
    k(f"v_add_f32 v{L}, v{L}, v{L+1}")
    k("s_branch C_FIN")

def helper(k):
    k("H_START:")
    k("s_setprio 3")
    k("s_sub_u32 s55, s3, 8")
    k("""v_lshrrev_b32 v3, 4, v0
         v_lshlrev_b32 v4, 2, v3
         v_and_b32 v6, 15, v0
         v_xor_b32 v6, v6, v4
         v_lshlrev_b32 v6, 4, v6
         v_lshl_add_u32 v5, v3, 11, v6
         s_lshl_b32 s60, s55, 15
         s_lshl_b32 s61, s5, 8
         s_add_u32 s60, s60, s61
         v_add_u32 v5, s60, v5""")
    k("""v_lshrrev_b32 v3, 3, v0
         s_lshl_b32 s60, s55, 3
         v_add_u32 v3, s60, v3
         v_bfe_u32 v4, v3, 1, 3
         v_and_b32 v6, 7, v0
         v_xor_b32 v6, v6, v4
         v_lshlrev_b32 v6, 4, v6
         v_lshl_add_u32 v6, v3, 11, v6
         s_lshl_b32 s60, s4, 1
         s_xor_b32 s61, s6, 1
         s_add_u32 s60, s60, s61
         s_lshl_b32 s60, s60, 16
         v_add_u32 v6, s60, v6
         s_lshl_b32 s56, s55, 12
         s_lshl_b32 s57, s55, 10
         s_add_u32 s57, s57, 16384""")
    def wdma(srd, stage_s, slot_s):
        k(f"s_lshl_b32 s60, {stage_s}, 17\ns_add_u32 m0, {slot_s}, s56")
        for i in range(4):
            k(f"buffer_load_dwordx4 v5, {srd}, s60 offen lds")
            if i < 3: k("s_add_u32 m0, m0, 1024\ns_add_u32 s60, s60, 8192")
    def p2dma(stage, slot):
        k(f"s_add_u32 s65, {stage}, s54\ns_and_b32 s65, s65, 15")
        wdma(WQ, "s65", slot)
        k(f"s_lshl_b32 s60, s65, 7\ns_add_u32 m0, {slot}, s57\nbuffer_load_dwordx4 v6, {X}, s60 offen lds")
    mk_tag(k)
    p2dma(0, P2_SLOT[0])
    k("s_barrier")
    p2dma(1, P2_SLOT[1])
    k("s_waitcnt vmcnt(5)\ns_barrier")
    p2dma(2, P2_SLOT[2]); p2dma(3, P2_SLOT[3])
    k("s_mov_b32 s67, 4")
    k("H_P2L:")
    for q in range(4):
        k("s_waitcnt vmcnt(10)\ns_barrier")
        k(f"s_add_u32 s68, s67, {q}")
        p2dma("s68", P2_SLOT[q])
    k("s_add_u32 s67, s67, 4\ns_cmp_lt_u32 s67, 16\ns_cbranch_scc1 H_P2L")
    def fa_load():
        k(f"s_mov_b32 s60, {WS_FA}\nbuffer_load_dwordx4 v[8:11], v2, {WS}, s60 offen sc1\nbuffer_load_dwordx4 v[12:15], v2, {WS}, s60 offen offset:1024 sc1")
    def fa_bad():
        for i in range(8): k(f"v_xor_b32 v{8+i}, {TAG}, v{8+i}")
        k("v_or3_b32 v8, v8, v9, v10\nv_or3_b32 v8, v8, v11, v12\nv_or3_b32 v8, v8, v13, v14\nv_or_b32 v8, v8, v15\nv_cmp_ne_u32 vcc, 0, v8")
    k("s_lshl_b32 s58, s55, 13")
    def kvdma(slot_s, lds):
        k(f"s_lshl_b32 s60, {slot_s}, 15\ns_add_u32 s60, s60, s58\ns_add_u32 s60, s60, {WS_KV}\ns_add_u32 m0, s58, {lds}")
        for i in range(4): k(f"buffer_load_dwordx4 v2, {WS}, s60 offen offset:{i*1024} sc1 lds")
        k("s_add_u32 m0, m0, 4096\ns_add_u32 s60, s60, 4096")
        for i in range(4): k(f"buffer_load_dwordx4 v2, {WS}, s60 offen offset:{i*1024} sc1 lds")
    k("s_waitcnt vmcnt(10)\ns_barrier")
    fa_load()
    k("s_waitcnt vmcnt(7)\ns_barrier")
    k("s_waitcnt vmcnt(2)\ns_barrier")
    k("s_waitcnt vmcnt(0)")
    fa_bad()
    k("s_mov_b32 s66, 0\ns_cbranch_vccnz H_A1")
    kvdma(0, KVA)
    k("s_mov_b32 s66, 1")
    k("H_A1:")
    k("s_barrier")
    k("s_cmp_eq_u32 s66, 1\ns_cbranch_scc1 H_A2")
    poll(k, "H_PA", fa_load, fa_bad)
    kvdma(0, KVA)
    k("H_A2:")
    stamp(k, 4)
    k("""s_sub_u32 s60, s2, 32
         s_and_b32 s61, s60, 7
         s_lshr_b32 s62, s60, 3
         s_lshr_b32 s63, s62, 2
         s_lshl_b32 s63, s63, 3
         s_add_u32 s63, s63, s61
         s_lshl_b32 s63, s63, 2
         s_and_b32 s62, s62, 3
         s_add_u32 s59, s63, s62
         s_cmp_ge_u32 s2, 32
         s_cselect_b32 s59, s59, 0
         s_cselect_b32 s64, 1, 0
         s_mov_b32 s74, 0x700000
         s_mov_b32 s75, 0x20000""")
    k("""v_lshrrev_b32 v3, 1, v0
         v_mul_u32_u24 v3, 7168, v3
         v_and_b32 v4, 1, v0
         v_lshl_add_u32 v7, v4, 4, v3
         s_lshl_b32 s60, s59, 5
         s_mul_i32 s61, s55, 1835008
         s_add_u32 s60, s60, s61
         v_add_u32 v7, s60, v7""")
    def gudma(i):
        k(f"""s_add_u32 s61, s59, {i}
              s_and_b32 s61, s61, 3
              s_cmp_lt_u32 s61, 2
              s_cselect_b32 s72, s32, s36
              s_cselect_b32 s73, s33, s37
              s_cselect_b32 s62, 0, {UP}
              s_and_b32 s61, s61, 1
              s_mul_i32 s60, s61, {4*32*7168}
              s_lshl_b32 s61, s61, 12
              s_add_u32 s62, s62, s61
              s_add_u32 m0, s62, s58""")
        for n in range(4):
            k(f"buffer_load_dwordx4 v7, s[72:75], s60 offen lds")
            if n < 3: k(f"s_add_u32 m0, m0, 1024\ns_add_u32 s60, s60, {32*7168}")
    cnt_ = [0]
    def ffn_begin():
        cnt_[0] += 1
        k(f"s_cmp_eq_u32 s64, 0\ns_cbranch_scc1 H_NF{cnt_[0]}")
    def ffn_end(wait, st=None):
        if wait: k(wait)
        k(f"s_branch H_NJ{cnt_[0]}\nH_NF{cnt_[0]}:\ns_waitcnt vmcnt(0) lgkmcnt(0)\nH_NJ{cnt_[0]}:")
        if st: stamp(k, st)
        k("s_barrier")
    def wopre(slots):
        for s in slots:
            k(f"s_add_u32 s65, s54, {s}\ns_and_b32 s65, s65, 15")
            wdma(WO, "s65", OPW + s*16384)
    FA, FB, FC = 16, 48, 80
    k("s_waitcnt vmcnt(0)\ns_barrier")
    stamp(k, 5)
    kvdma(1, KVB)
    k("s_or_b32 s60, s2, s55\ns_cmp_lg_u32 s60, 0\ns_cbranch_scc1 H_NOTOP")
    top8(k)
    k("H_NOTOP:")
    ffn_begin(); gudma(0); ffn_end("s_waitcnt vmcnt(4)", 9)
    kvdma(2, KVA)
    ffn_begin(); gudma(1); gudma(2); ffn_end("s_waitcnt vmcnt(8)", 10)
    kvdma(3, KVB)
    ffn_begin(); gudma(3)
    k(f"""v_lshrrev_b32 v3, 4, v0
          v_and_b32 v4, 15, v0
          v_lshlrev_b32 v4, 4, v4
          v_lshl_add_u32 v3, v3, 11, v4
          s_lshr_b32 s60, s59, 3
          s_lshl_b32 s60, s60, 18
          s_and_b32 s61, s59, 7
          s_lshl_b32 s61, s61, 8
          s_add_u32 s60, s60, s61
          s_lshl_b32 s61, s55, 16
          s_add_u32 s60, s60, s61
          s_add_u32 m0, s58, {DOWN}""")
    for i in range(8):
        k(f"buffer_load_dwordx4 v3, {WD}, s60 offen lds")
        if i < 7: k("s_add_u32 m0, m0, 1024\ns_add_u32 s60, s60, 8192")
    ffn_end("s_waitcnt vmcnt(12)", 11)
    kvdma(4, KVA)
    def idx_load():
        k(f"v_and_b32 v3, 7, v0\nv_lshlrev_b32 v3, 3, v3\ns_mov_b32 s60, {WS_IDX}\nbuffer_load_dwordx2 v[8:9], v3, {WS}, s60 offen sc1")
    poll(k, "H_PI", idx_load, lambda: k(f"v_cmp_ne_u32 vcc, {TAG}, v9"))
    k("v_and_b32 v10, 0xffff, v8\nv_sub_u32 v10, 0xffff, v10\nv_and_b32 v10, 2047, v10")
    ffn_begin()
    k(f"""v_lshrrev_b32 v4, 4, v0
          v_lshlrev_b32 v4, 4, v4
          v_lshl_add_u32 v3, v10, 11, v4
          v_and_b32 v4, 8, v0
          v_cmp_eq_u32 vcc, 0, v4
          v_mov_b32 v4, {OOB:#x}
          v_cndmask_b32 v3, v4, v3, vcc
          s_lshl_b32 s60, s55, 9""")
    for ks in range(8): k(f"buffer_load_dwordx4 {vr(FA+4*ks,4)}, v3, {X}, s60 offen offset:{ks*64}")
    k(f"""v_lshrrev_b32 v3, 4, v0
          v_bfe_u32 v4, v0, 2, 2
          v_lshl_add_u32 v3, v3, 3, v4
          v_and_b32 v4, 3, v0
          v_lshlrev_b32 v4, 3, v4
          v_lshl_add_u32 v3, v3, 5, v4
          v_add_u32 v3, s58, v3""")
    for base, acc in ((GATE, FC), (UP, FC+4)):
        for ks in range(8):
            k(f"ds_read_b64_tr_b16 {vr(FB+4*ks,2)}, v3 offset:{base+ks*1024}")
            k(f"ds_read_b64_tr_b16 {vr(FB+4*ks+2,2)}, v3 offset:{base+ks*1024+128}")
        k("s_waitcnt vmcnt(0) lgkmcnt(0)")
        for ks in range(8): k(m16(acc, FB+4*ks, FA+4*ks, "0" if ks == 0 else None))
    k(f"""v_and_b32 v3, 15, v0
          v_lshlrev_b32 v3, 6, v3
          v_lshrrev_b32 v4, 4, v0
          v_lshl_add_u32 v3, v4, 4, v3
          v_add_u32 v3, s58, v3
          ds_write_b128 v3, {vr(FC,4)} offset:{GATE}
          ds_write_b128 v3, {vr(FC+4,4)} offset:{GATE+1024}""")
    ffn_end("s_waitcnt lgkmcnt(0)", 12)
    k("s_cmp_eq_u32 s64, 0\ns_cbranch_scc1 H_S2N\ns_cmp_lg_u32 s55, 0\ns_cbranch_scc1 H_S2N")
    k(f"v_lshlrev_b32 v3, 3, v0")
    for w in range(4):
        k(f"ds_read_b64 {vr(FA+2*w,2)}, v3 offset:{GATE+w*8192}\nds_read_b64 {vr(FB+2*w,2)}, v3 offset:{GATE+w*8192+1024}")
    k("s_waitcnt lgkmcnt(0)")
    for j in range(2):
        for base, dst in ((FA, FC), (FB, FC+2)):
            k(f"v_add_f32 v{dst+j}, v{base+j}, v{base+2+j}")
            for w in range(2, 4): k(f"v_add_f32 v{dst+j}, v{dst+j}, v{base+2*w+j}")
        sigmoid(k, FC+4+j, FC+j)
        k(f"v_mul_f32 v{FC+4+j}, v{FC+4+j}, v{FC+j}\nv_mul_f32 v{FC+4+j}, v{FC+4+j}, v{FC+2+j}")
    k(f"""v_cvt_pk_bf16_f32 v{FC+6}, v{FC+4}, v{FC+5}
          v_lshrrev_b32 v3, 3, v0
          v_mul_u32_u24 v3, 7168, v3
          v_and_b32 v4, 7, v0
          v_lshl_add_u32 v3, v4, 2, v3
          s_lshl_b32 s60, s59, 5
          s_add_u32 s60, s60, {WS_H}
          buffer_store_dword v{FC+6}, v3, {WS}, s60 offen sc1""")
    kvdma(5, KVB)
    k(f"""s_lshr_b32 s60, s59, 3
          s_lshl_b32 s60, s60, 7
          s_and_b32 s61, s59, 7
          s_lshl_b32 s61, s61, 2
          s_add_u32 s60, s60, s61
          s_add_u32 s60, s60, {WS_FH}
          v_mov_b32 v3, 0""")
    lane_mask_off(k, 3, 3, 1, 4)
    k(f"v_mov_b32 v4, {TAG}\ns_waitcnt vmcnt(8)\nbuffer_store_dword v4, v3, {WS}, s60 offen sc1")
    k("s_branch H_S2B")
    k("H_S2N:")
    kvdma(5, KVB)
    k("H_S2B:")
    wopre([2, 3])
    k("s_waitcnt vmcnt(8)")
    stamp(k, 13)
    k("s_barrier")
    kvdma(6, KVA)
    ffn_begin()
    def fh_load():
        k(f"""v_and_b32 v3, 7, v0
              v_lshlrev_b32 v3, 2, v3
              s_lshr_b32 s60, s59, 3
              s_lshl_b32 s60, s60, 7
              s_add_u32 s60, s60, {WS_FH}
              buffer_load_dword v11, v3, {WS}, s60 offen sc1""")
    poll(k, "H_PH", fh_load, lambda: k(f"v_cmp_ne_u32 vcc, {TAG}, v11"))
    k(f"""v_and_b32 v3, 7, v0
          v_mul_u32_u24 v3, 7168, v3
          v_lshrrev_b32 v4, 4, v0
          v_lshl_add_u32 v3, v4, 4, v3
          v_and_b32 v4, 8, v0
          v_cmp_eq_u32 vcc, 0, v4
          v_mov_b32 v4, {OOB:#x}
          v_cndmask_b32 v3, v4, v3, vcc
          s_lshr_b32 s60, s59, 3
          s_lshl_b32 s60, s60, 8
          s_add_u32 s60, s60, {WS_H}""")
    for ks in range(4): k(f"buffer_load_dwordx4 {vr(FA+4*ks,4)}, v3, {WS}, s60 offen offset:{ks*64} sc1")
    k(f"""v_lshrrev_b32 v3, 4, v0
          v_bfe_u32 v4, v0, 2, 2
          v_lshl_add_u32 v3, v3, 3, v4
          v_and_b32 v4, 3, v0
          v_lshlrev_b32 v4, 3, v4
          v_lshl_add_u32 v3, v3, 8, v4
          s_lshl_b32 s60, s55, 6
          s_add_u32 s60, s60, {DOWN}
          v_add_u32 v3, s60, v3""")
    for t in range(2):
        for ks in range(4):
            k(f"ds_read_b64_tr_b16 {vr(FB+16*t+4*ks,2)}, v3 offset:{ks*8192+t*32}")
            k(f"ds_read_b64_tr_b16 {vr(FB+16*t+4*ks+2,2)}, v3 offset:{ks*8192+1024+t*32}")
    k("s_waitcnt vmcnt(0) lgkmcnt(0)")
    for t in range(2):
        for ks in range(4): k(m16(FC+4*t, FB+16*t+4*ks, FA+4*ks, "0" if ks == 0 else None))
    k(f"""v_and_b32 v3, 7, v0
          v_lshlrev_b32 v3, 12, v3
          v_lshrrev_b32 v4, 4, v0
          v_lshl_add_u32 v3, v4, 4, v3
          v_and_b32 v4, 8, v0
          v_cmp_eq_u32 vcc, 0, v4
          v_mov_b32 v4, {OOB:#x}
          v_cndmask_b32 v3, v4, v3, vcc
          s_lshr_b32 s60, s59, 3
          s_lshl_b32 s60, s60, 15
          s_and_b32 s61, s59, 7
          s_lshl_b32 s61, s61, 9
          s_add_u32 s60, s60, s61
          s_lshl_b32 s61, s55, 7
          s_add_u32 s60, s60, s61
          s_add_u32 s60, s60, {WS_YP}
          buffer_store_dwordx4 {vr(FC,4)}, v3, {WS}, s60 offen sc1
          buffer_store_dwordx4 {vr(FC+4,4)}, v3, {WS}, s60 offen offset:64 sc1""")
    ffn_end(None)
    kvdma(7, KVB)
    k("s_cmp_eq_u32 s64, 0\ns_cbranch_scc1 H_S4N")
    k(f"""s_and_b32 s60, s59, 7
          s_lshl_b32 s60, s60, 9
          s_lshr_b32 s61, s59, 3
          s_lshl_b32 s61, s61, 2
          s_add_u32 s61, s61, s55
          s_lshl_b32 s61, s61, 2
          s_add_u32 s60, s60, s61
          s_add_u32 s60, s60, {WS_FY}
          v_mov_b32 v3, 0""")
    lane_mask_off(k, 3, 3, 1, 4)
    k(f"v_mov_b32 v4, {TAG}\ns_waitcnt vmcnt(8)\nbuffer_store_dword v4, v3, {WS}, s60 offen sc1")
    k("H_S4N:")
    wopre([0, 1, 4])
    k(f"v_and_b32 v3, 7, v0\nv_lshlrev_b32 v3, 2, v3\nv_add_u32 v3, {YS-64}, v3\nds_write_b32 v3, v10")
    k("s_waitcnt vmcnt(12)\ns_barrier")
    k("s_cmp_lg_u32 s55, 0\ns_cbranch_scc1 H_K8")
    kvdma(0, KVA)
    k("H_K8:")
    for t in range(2):
        k(f"""s_lshl_b32 s62, s55, 1
              s_add_u32 s62, s62, {t}
              v_readlane_b32 s63, v10, s62
              v_readlane_b32 s66, v8, s62
              s_lshr_b32 s60, s63, 6
              s_cmp_lg_u32 s60, s4
              s_cbranch_scc1 H_Y{t}D""")
        def fy_load():
            k("v_min_u32 v3, 55, v0\nv_lshlrev_b32 v3, 3, v3")
            k(f"s_lshl_b32 s60, s5, 9\ns_add_u32 s60, s60, {WS_FY}\nbuffer_load_dwordx2 v[12:13], v3, {WS}, s60 offen sc1")
        def fy_bad():
            k(f"v_xor_b32 v12, {TAG}, v12\nv_xor_b32 v13, {TAG}, v13\nv_or_b32 v12, v12, v13\nv_cmp_ne_u32 vcc, 0, v12")
        poll(k, f"H_PY{t}", fy_load, fy_bad)
        k(f"""v_and_b32 v3, 31, v0
              v_lshlrev_b32 v3, 4, v3
              v_lshrrev_b32 v4, 5, v0
              v_lshl_add_u32 v4, v4, 15, v3
              s_lshl_b32 s60, s62, 12
              s_lshl_b32 s61, s5, 9
              s_add_u32 s60, s60, s61
              s_add_u32 s60, s60, {WS_YP}""")
        for m in range(14):
            k(f"buffer_load_dwordx4 {vr(16+4*m,4)}, v4, {WS}, s60 offen sc1")
            if m < 13: k("s_add_u32 s60, s60, 65536")
        k(f"""s_lshr_b32 s66, s66, 16
              s_and_b32 s60, s66, 0x7fff
              s_xor_b32 s61, s66, 0xffff
              s_cmp_gt_u32 s66, 0x7fff
              s_cselect_b32 s66, s60, s61
              s_lshl_b32 s66, s66, 16
              v_mov_b32 v12, s66""")
        sigmoid(k, 12, 12)
        k("s_waitcnt vmcnt(0)")
        for m in range(1, 14):
            for c in range(4): k(f"v_add_f32 v{16+c}, v{16+c}, v{16+4*m+c}")
        for c in range(4):
            k(f"v_mov_b32 v{20+c}, v{16+c}\nv_permlane32_swap_b32 v{16+c}, v{20+c}\nv_add_f32 v{16+c}, v{16+c}, v{20+c}\nv_mul_f32 v{16+c}, v{16+c}, v12")
        k(f"s_lshl_b32 s60, s62, 9\ns_add_u32 s60, s60, {YS}\nv_add_u32 v3, s60, v3\nds_write_b128 v3, v[16:19]")
        k(f"H_Y{t}D:")
    k("s_waitcnt vmcnt(0) lgkmcnt(0)\ns_barrier")
    stamp(k, 6)
    k(f"""s_lshl_b32 s60, s4, 1
          s_lshr_b32 s61, s55, 1
          s_add_u32 s60, s60, s61
          s_lshl_b32 s60, s60, 16
          s_and_b32 s61, s55, 1
          s_lshl_b32 s61, s61, 11
          s_add_u32 s60, s60, s61
          s_add_u32 s60, s60, {WS_OF}
          v_add_u32 v6, s60, v2
          s_lshl_b32 s57, s55, 11
          s_add_u32 s57, s57, {OPO}""")
    k("s_barrier")
    stamp(k, 7)
    def fd_load():
        k(f"v_lshlrev_b32 v3, 2, v0\ns_lshl_b32 s60, s4, 8\ns_add_u32 s60, s60, {WS_FD}\nbuffer_load_dword v11, v3, {WS}, s60 offen sc1")
    poll(k, "H_PD", fd_load, lambda: k(f"v_cmp_ne_u32 vcc, {TAG}, v11"))
    stamp(k, 8)
    def odma(slot8_s):
        k(f"s_lshl_b32 s60, s65, 12\ns_add_u32 m0, {slot8_s}, s57")
        k(f"buffer_load_dwordx4 v6, {WS}, s60 offen sc1 lds\nbuffer_load_dwordx4 v6, {WS}, s60 offen offset:1024 sc1 lds")
    for s in range(OP_SLOTS):
        k(f"s_add_u32 s65, s54, {s}\ns_and_b32 s65, s65, 15")
        odma(s*8192)
    k(f"s_waitcnt vmcnt({2*(OP_SLOTS-1)})\ns_barrier")
    def cnt(st): return 2 if st < OP_SLOTS else 6
    for s in range(16):
        pend = sum(cnt(t) for t in range(s + 2, min(s + OP_SLOTS, 16)))
        k(f"s_waitcnt vmcnt({pend})\ns_barrier")
        if s + OP_SLOTS < 16:
            k(f"s_add_u32 s65, s54, {s+OP_SLOTS}\ns_and_b32 s65, s65, 15")
            odma((s % OP_SLOTS) * 8192)
            wdma(WO, "s65", OPW + (s % OP_SLOTS) * 16384)
    dump(k)

def top8(k):
    T = 16
    k(f"s_mov_b32 m0, {KEYS}\ns_mov_b32 s60, {WS_KEYS}")
    for i in range(4): k(f"buffer_load_dwordx4 v2, {WS}, s60 offen offset:{i*1024} sc1 lds")
    k(f"s_mov_b32 m0, {KEYS+4096}\ns_mov_b32 s60, {WS_KEYS+4096}")
    for i in range(4): k(f"buffer_load_dwordx4 v2, {WS}, s60 offen offset:{i*1024} sc1 lds")
    k(f"v_lshlrev_b32 v3, 2, v0\ns_mov_b32 s60, {WS_GMAX}\nbuffer_load_dword v{T}, v3, {WS}, s60 offen sc1")
    k("s_waitcnt vmcnt(0)")
    k(f"v_lshrrev_b32 v{T+3}, 3, v0\nv_mov_b32 v{T+2}, 0")
    for r in range(8):
        k(f"v_mov_b32 v{T+1}, v{T}")
        wave_max_u32(k, T+1)
        k(f"""v_readlane_b32 s60, v{T+1}, 63
              v_cmp_eq_u32 vcc, s60, v{T}
              v_cndmask_b32 v{T}, v{T}, 0, vcc
              v_mov_b32 v{T+4}, s60
              v_cmp_eq_u32 vcc, {r}, v{T+3}
              v_cndmask_b32 v{T+2}, v{T+2}, v{T+4}, vcc""")
    k(f"""v_and_b32 v{T+2}, 0xffff, v{T+2}
          v_sub_u32 v{T+2}, 0xffff, v{T+2}
          v_bfe_u32 v{T+2}, v{T+2}, 5, 6
          v_and_b32 v{T+4}, 7, v0
          v_lshlrev_b32 v{T+4}, 4, v{T+4}
          v_lshl_add_u32 v{T+2}, v{T+2}, 7, v{T+4}
          v_add_u32 v{T+2}, {KEYS}, v{T+2}
          ds_read_b128 {vr(T+8,4)}, v{T+2}
          s_waitcnt lgkmcnt(0)""")
    a, b, c, d = T+8, T+9, T+10, T+11
    def ce(x, y):
        k(f"v_max_u32 v{T+5}, v{x}, v{y}\nv_min_u32 v{y}, v{x}, v{y}\nv_mov_b32 v{x}, v{T+5}")
    ce(a, b); ce(c, d); ce(a, c); ce(b, d); ce(b, c)
    k(f"v_mov_b32 v{T+2}, 0")
    for r in range(8):
        k(f"v_mov_b32 v{T+1}, v{a}")
        wave_max_u32(k, T+1)
        k(f"""v_readlane_b32 s60, v{T+1}, 63
              v_cmp_eq_u32 vcc, s60, v{a}
              v_cndmask_b32 v{a}, v{a}, v{b}, vcc
              v_cndmask_b32 v{b}, v{b}, v{c}, vcc
              v_cndmask_b32 v{c}, v{c}, v{d}, vcc
              v_cndmask_b32 v{d}, v{d}, 0, vcc
              v_writelane_b32 v{T+2}, s60, {r}""")
    k(f"v_lshlrev_b32 v{T+4}, 3, v0\nv_mov_b32 v{T+3}, {TAG}")
    lane_mask_off(k, T+4, T+4, 8, T+5)
    k(f"s_mov_b32 s60, {WS_IDX}\nbuffer_store_dwordx2 {vr(T+2,2)}, v{T+4}, {WS}, s60 offen sc1")

def main(out):
    ref = open(f"cdna_kernels/{NAME}.s.ref").read().split("\n")
    head = [l for l in ref if l.startswith(";") and "@launch" not in l and "Override launch" not in l and "grid=ceil" not in l]
    lines = head + [f"; @launch grid=(256,1,1) block=(768,1,1) lds={LDS_SIZE}", '.amdgcn_target "amdgcn-amd-amdhsa--gfx950"', ".text"]
    body, n = pad_hazards(gen(), verbose=("-v" in sys.argv))
    print(len(body), "lines,", n, "pads")
    lines += body
    lines += ['.section .rodata,"a"', ".p2align 6", f""".amdhsa_kernel {NAME}_kernel
  .amdhsa_next_free_vgpr {NVGPR}
  .amdhsa_next_free_sgpr 102
  .amdhsa_accum_offset {NVGPR}
  .amdhsa_group_segment_fixed_size 0
  .amdhsa_kernarg_size 112
  .amdhsa_user_sgpr_count 2
  .amdhsa_user_sgpr_kernarg_segment_ptr 1
  .amdhsa_system_sgpr_workgroup_id_x 1
.end_amdhsa_kernel"""]
    open(out, "w").write("\n".join(lines) + "\n")

if __name__ == "__main__":
    main(sys.argv[1] if len(sys.argv) > 1 and not sys.argv[1].startswith("-") else f"fused.s")
```
